```python
import torch

def _softmax(x, axis=-1):
    return torch.softmax(x, dim=axis)

def _gelu(x):
    return torch.nn.functional.gelu(x, approximate='tanh')

def _silu(x):
    return torch.nn.functional.silu(x)

def _sigmoid(x):
    return torch.sigmoid(x)

def _layernorm(x, axis=-1, eps=1e-05):
    m = x.mean(dim=axis, keepdim=True)
    v = x.var(dim=axis, keepdim=True, unbiased=False)
    return (x - m) / torch.sqrt(v + eps)

def _scatter_add(tgt, idx, src, axis=0):
    return tgt.clone().index_add_(axis, idx, src)

def _segment_sum(src, seg, n):
    out = torch.zeros((n,) + src.shape[1:], dtype=src.dtype)
    return out.index_add_(0, seg, src)

def _pad(x, pw):
    flat = tuple((v for pair in reversed(pw) for v in pair))
    return torch.nn.functional.pad(x, flat)
kernel_name = 'adaLN_cond__sliding_local_dilated__glu_gated_glu__prompt'

def setup_inputs():

    _w = lambda a: (lambda t: t.to(torch.bfloat16) if t.is_floating_point() else t)(torch.as_tensor(a))

    def _A_setup():
        B, S, D = (1, 2048, 512)
        return {'x': _w((lambda *s: torch.randn(*s, dtype=torch.bfloat16) * 0.05)(B, S, D)), 'wqkv': _w((lambda *s: torch.randn(*s, dtype=torch.bfloat16) * 0.05)(D, 3 * D)), 'wo': _w((lambda *s: torch.randn(*s, dtype=torch.bfloat16) * 0.05)(D, D))}
    _A_in = _A_setup()

    def _B_setup():
        B, S, D, F = (1, 2048, 512, 1376)
        return {'x': _w((lambda *s: torch.randn(*s, dtype=torch.bfloat16) * 0.05)(B, S, D)), 'w_gate': _w((lambda *s: torch.randn(*s, dtype=torch.bfloat16) * 0.05)(D, F)), 'w_up': _w((lambda *s: torch.randn(*s, dtype=torch.bfloat16) * 0.05)(D, F)), 'w_down': _w((lambda *s: torch.randn(*s, dtype=torch.bfloat16) * 0.05)(F, D))}
    _B_in = _B_setup()
    return {'A_x': _A_in['x'], 'A_wqkv': _A_in['wqkv'], 'A_wo': _A_in['wo'], 'B_x': _B_in['x'], 'B_w_gate': _B_in['w_gate'], 'B_w_up': _B_in['w_up'], 'B_w_down': _B_in['w_down'], 'c': _w((lambda *s: torch.randn(*s, dtype=torch.bfloat16) * 0.1)(1, 512) * 8.0), 'w_mod': _w((lambda *s: torch.randn(*s, dtype=torch.bfloat16) * 0.1)(512, 6 * 512) * 512 ** (-0.5) * 8.0)}

def reference(A_x, A_wqkv, A_wo, B_x, B_w_gate, B_w_up, B_w_down, c, w_mod):

    def _A_ref(x, wqkv, wo):
        B, S, D = x.shape
        H = 32
        Dh = D // H
        W, dil = (8, 2)
        qkv = (lambda x, *d: x.permute(*d))((x @ wqkv).reshape(B, S, 3, H, Dh), 2, 0, 3, 1, 4)
        q, k, v = (qkv[0], qkv[1], qkv[2])
        scale = Dh ** (-0.5)
        pos = torch.arange(S)
        off = torch.arange(W) * dil
        idx = pos[:, None] - off[None, :]
        mask = idx >= 0
        idx_c = torch.where(mask, idx, 0).reshape(-1)
        kg = k[:, :, idx_c, :].reshape(B, H, S, W, Dh)
        vg = v[:, :, idx_c, :].reshape(B, H, S, W, Dh)
        logits = torch.einsum('bhsd,bhswd->bhsw', q, kg) * scale
        logits = torch.where(mask[None, None, :, :], logits, -1000000000.0)
        attn = _softmax(logits, axis=-1)
        o = torch.einsum('bhsw,bhswd->bhsd', attn, vg)
        return (lambda x, *d: x.permute(*d))(o, 0, 2, 1, 3).reshape(B, S, D) @ wo

    def _B_ref(x, w_gate, w_up, w_down):
        g = torch.einsum('bsd,df->bsf', x, w_gate)
        u = torch.einsum('bsd,df->bsf', x, w_up)
        h = _sigmoid(g) * u
        return torch.einsum('bsf,fd->bsd', h, w_down)
    x = A_x
    mod = (_silu(c) @ w_mod).reshape(c.shape[0], 6, 1, -1)
    sa, ca, ga, sb, cb, gb = (mod[:, 0].clone(), mod[:, 1].clone(), mod[:, 2].clone(), mod[:, 3].clone(), mod[:, 4].clone(), mod[:, 5].clone())
    h = _layernorm(x, axis=-1) * (1 + ca) + sa
    x = x + ga * _A_ref(h, A_wqkv, A_wo)
    h = _layernorm(x, axis=-1) * (1 + cb) + sb
    x = x + gb * _B_ref(h, B_w_gate, B_w_up, B_w_down)
    return x
```

```python
import re
REG = re.compile(r'^(-?)(?:abs\()?([vas])(?:(\d+)|\[(\d+):(\d+)\])\)?$')
def regs_of(tok):
    tok = tok.strip()
    if tok in ('vcc',): return [('s',106),('s',107)]
    if tok == 'vcc_lo': return [('s',106)]
    if tok == 'vcc_hi': return [('s',107)]
    if tok == 'exec': return [('s',126),('s',127)]
    if tok == 'm0': return [('s',124)]
    m = REG.match(tok)
    if not m: return []
    f = m.group(2)
    if m.group(3) is not None: return [(f,int(m.group(3)))]
    return [(f,i) for i in range(int(m.group(4)), int(m.group(5))+1)]

TRANS = ('v_exp_f32','v_log_f32','v_rcp_f32','v_rsq_f32','v_sqrt_f32','v_sin_f32','v_cos_f32')
class I:
    __slots__=('text','op','dst','src','kind','srcC','passes','sgsrc','lds','wide','dpp')
def split_ops(s):
    out=[];d=0;cur=''
    for ch in s:
        if ch in '[(': d+=1
        if ch in '])': d-=1
        if ch==',' and d==0: out.append(cur.strip());cur=''
        else: cur+=ch
    if cur.strip(): out.append(cur.strip())
    return out
def parse(text):
    i=I(); i.text=text
    parts=text.split(None,1); op=parts[0]; i.op=op
    rest=parts[1] if len(parts)>1 else ''
    ops=split_ops(rest)
    mods=''
    if ops:
        lp=ops[-1].split(None,1)
        ops[-1]=lp[0]; mods=lp[1] if len(lp)>1 else ''
    R=[regs_of(o) for o in ops]
    i.dst=[];i.src=[];i.srcC=[];i.passes=0;i.lds=False;i.wide=False;i.dpp=False
    flat=lambda l:[x for y in l for x in y]
    if op.startswith('v_mfma'):
        i.kind='mfma'; i.dst=R[0]; i.src=R[1]+R[2]; i.srcC=R[3]
        i.passes=8 if '32x32' in op else 4
    elif op.startswith('v_'):
        i.kind='valu'
        i.dpp = ('_dpp' in op) or ('row_' in mods) or ('quad_perm' in mods)
        if op.startswith('v_cmp'):
            i.dst=R[0]; i.src=flat(R[1:])
        elif op.startswith('v_permlane') and 'swap' in op:
            i.dst=R[0]+R[1]; i.src=R[0]+R[1]
        elif '_co_' in op:
            i.dst=R[0]+R[1]; i.src=flat(R[2:])
        elif op.startswith(('v_fmac','v_dot2c','v_pk_fmac')):
            i.dst=R[0]; i.src=flat(R)
        elif op=='v_nop': pass
        else:
            i.dst=R[0]; i.src=flat(R[1:])
            if i.dpp: i.src=i.src+R[0]
        if op.startswith('v_cndmask') and len(ops)==3: i.src+=regs_of('vcc')
    elif op.startswith('ds_'):
        i.kind='ds'
        if op.startswith(('ds_read','ds_bpermute','ds_permute','ds_swizzle')):
            i.dst=R[0]; i.src=flat(R[1:])
        else: i.src=flat(R)
    elif op.startswith(('buffer_','global_')):
        i.kind='vmem'
        allm=' '+mods+' '
        if op in('buffer_wbl2','buffer_inv'): pass
        elif ' lds ' in allm or 'load_lds' in op:
            i.lds=True; i.src=flat(R)+regs_of('m0')
        elif 'load' in op:
            i.dst=R[0]; i.src=flat(R[1:])
        elif 'atomic' in op:
            i.src=flat(R)
            if ' sc0 ' in allm: i.dst=R[0]
        else:
            i.src=flat(R); i.wide=('x3' in op or 'x4' in op)
            i.srcC = R[0] if op.startswith('buffer') else R[1]
    elif op.startswith(('s_load','s_memtime','s_memrealtime','s_buffer_load')):
        i.kind='smem'; i.dst=R[0]; i.src=flat(R[1:])
    elif op.startswith('s_'):
        i.kind='salu'
        if op.startswith(('s_cmp','s_cbranch','s_branch','s_waitcnt','s_barrier','s_nop','s_sleep','s_setprio','s_endpgm','s_bitcmp')):
            i.src=flat(R)
        else:
            i.dst=R[0]; i.src=flat(R[1:])
            if 'saveexec' in op: i.dst=i.dst+regs_of('exec')
    else:
        raise ValueError(text)
    return i

class Asm:
    def __init__(self):
        self.out=[]
        self.vm=[]
        self.lg=[]
        self.hist=[]
        self.region=0; self.nreg=0; self.nid=0
        self.snap={}
        self.nnop=0; self.nlab=0
        self.smem_pending=False
    def raw(self,t): self.out.append(t)
    def comment(self,t): self.out.append('    ; '+t)
    def _age(self,n):
        for h in self.hist: h[0]+=n
        self.hist=[h for h in self.hist if h[0]<=24]
    def _put(self,text,n=1):
        self.out.append('    '+text); self._age(n)
    def nop(self,n):
        while n>0:
            k=min(n,16); self._put(f's_nop {k-1}',k); n-=k; self.nnop+=1
    def _count(self,q,idx):
        r=q[idx]['region']
        return sum(1 for e in q[idx+1:] if e['region']==0 or e['region']==r or e['region']==self.region)
    def _need(self,q,regs):
        idx=-1
        for k,e in enumerate(q):
            if e['regs'] & regs: idx=k
        return idx
    def _dowait(self,vi,li):
        parts=[]
        if vi>=0:
            n=min(self._count(self.vm,vi),63); parts.append(f'vmcnt({n})')
            self._retire('vm',vi)
        if li>=0:
            n=min(self._count(self.lg,li),15); parts.append(f'lgkmcnt({n})')
            self._retire('lg',li)
        if parts: self._put('s_waitcnt '+' '.join(parts))
    def _retire(self,qn,idx):
        q=getattr(self,qn)
        if self.region==0: q=q[idx+1:]
        else:
            nq=[]
            for k,e in enumerate(q):
                if k<=idx:
                    if e['region']==self.region: continue
                    e=dict(e); e.setdefault('saved',e['regs']); e['regs']=set(); e['done_in']=self.region
                nq.append(e)
            q=nq
        setattr(self,qn,q)
    def wait_tok(self,*toks):
        vi=-1;li=-1
        for t in toks:
            for k,e in enumerate(self.vm):
                if e['id']==t and e.get('done_in')!=self.region: vi=max(vi,k)
            for k,e in enumerate(self.lg):
                if e['id']==t and e.get('done_in')!=self.region: li=max(li,k)
        self._dowait(vi,li)
    def wait_vm0(self):
        self._put('s_waitcnt vmcnt(0)')
        if self.vm: self._retire('vm',len(self.vm)-1)
    def wait_lg0(self):
        self._put('s_waitcnt lgkmcnt(0)'); self.smem_pending=False
        if self.lg: self._retire('lg',len(self.lg)-1)
    def _hazard(self,c):
        need=0
        cs=set(c.src); cd=set(c.dst); cC=set(c.srcC) if c.kind=='mfma' else set()
        for age,p in self.hist:
            pd=set(p.dst); w=0
            if p.kind=='valu':
                vd={r for r in pd if r[0]!='s'}; sd={r for r in pd if r[0]=='s'}
                if c.kind=='mfma' and vd&(cs|cC): w=max(w,2)
                if c.kind=='valu':
                    if vd&cs:
                        if c.op.startswith('v_permlane') or c.dpp: w=max(w,2)
                        if c.op.startswith(('v_readlane','v_readfirstlane')): w=max(w,1)
                        if p.op.startswith(TRANS): w=max(w,1)
                    if sd&cs: w=max(w,4 if c.op.startswith(('v_readlane','v_writelane')) else 2)
                if p.op.startswith('v_dot') and (vd&(cs|cd|cC)):
                    same = c.op==p.op
                    if not (same and not (vd & set(c.src[:-1] if not c.op.startswith('v_dot2c') else c.src[1:]))): w=max(w,3)
                if c.kind=='vmem' and sd&cs: w=max(w,5)
                if c.kind=='salu' and sd&cs: w=max(w,1)
            elif p.kind=='mfma':
                L=12 if p.passes==8 else 8
                if c.kind=='mfma':
                    if pd&cs: w=max(w,L)
                    if pd&cC:
                        if not (list(p.dst)==list(c.srcC) and p.passes==c.passes): w=max(w,L-2)
                    elif pd&cd: w=max(w,L-2)
                elif c.kind in('valu','vmem','ds'):
                    if pd&(cs|cd): w=max(w,L)
                    if c.kind=='valu' and set(p.srcC)&cd: w=max(w,7 if p.passes==8 else 3)
            elif p.kind=='salu':
                if ('s',124) in pd and c.kind=='vmem' and c.lds: w=max(w,1)
            elif p.kind=='vmem':
                if p.wide and set(p.srcC)&cd: w=max(w,2)
            elif p.kind=='ds':
                pass
            if w-age>need: need=w-age
        return need
    def __call__(self,text):
        toks=None
        for line in text.split('\n'):
            line=line.strip()
            if line: toks=self.emit(line)
        return toks
    def emit(self,text):
        c=parse(text)
        if c.kind=='vmem' and c.dst==[('v',14)]: c.dst=[]
        touched=set(c.src)|set(c.dst)|set(c.srcC)
        vi=self._need(self.vm,touched); li=self._need(self.lg,touched)
        self._dowait(vi,li)
        n=self._hazard(c)
        if n>0: self.nop(n)
        self.out.append('    '+text)
        self._age(1)
        self.hist.append([0,c])
        tok=None
        if c.kind=='vmem':
            self.nid+=1; tok=self.nid
            self.vm.append(dict(regs=set(c.dst),region=self.region,id=tok))
        elif c.kind=='ds':
            assert not self.smem_pending, 'ds op while smem pending'
            self.nid+=1; tok=self.nid
            self.lg.append(dict(regs=set(c.dst),region=self.region,id=tok))
        elif c.kind=='smem':
            self.smem_pending=True
        if c.op.startswith(('s_cbranch','s_branch')):
            lab=text.split()[1]
            self.snap.setdefault(lab,[]).append([[a,p] for a,p in self.hist])
        return tok
    def newlabel(self,base='L'):
        self.nlab+=1; return f'{base}_{self.nlab}'
    def label(self,name):
        self.out.append(name+':')
        for s in self.snap.get(name,[]):
            self.hist+= [[a,p] for a,p in s]
    def barrier(self):
        self._put('s_barrier')
    def begin_region(self):
        assert self.region==0
        self.nreg+=1; self.region=self.nreg
    def end_region(self):
        for qn in('vm','lg'):
            q=getattr(self,qn)
            for e in q:
                if e.get('done_in')==self.region:
                    e['regs']=e.pop('saved'); e.pop('done_in')
        self.region=0
    def text(self): return '\n'.join(self.out)+'\n'
```

```python
import sys
from asmlib import Asm
NAME="adaLN_cond__sliding_local_dilated__glu_gated_glu__prompt"
TS = '--ts' in sys.argv

MODT=131072; CS=143360; SCR=147456
MODP=0x10000; TSOFF=0x40000; CL0=0x200000; CLS=0x100000
XCC=0; FLAGS=0x100; STATS=0x1000; OO=0x10000; ZZ=0x30000; HH=0x50000; DUMMY=0xB0000
X,WQ,WO,WG,WU,WD,CC,WM,OUT,WS = [f's[{i}:{i+3}]' for i in range(28,68,4)]
sW,sX,sA,sRB,sL3,sA16,sCL,sTAG,sFAST = [f's{i}' for i in range(68,77)]
sM,sKH='s77','s78'
sS0='s79'
sTB=[f's{i}' for i in range(80,84)]
sROT=[f's{i}' for i in range(84,88)]
t0,t1,t2,t3='s88','s89','s90','s91'
sMASK='s[92:93]'; sP='s[94:95]'; sCNT='s96'; sOFF='s97'; sM0='s98'; sTT='s99'
vL='v1'; vL16='v2'; vL4='v3'; vTS='v15'
LOG2E=1.4426950408889634
import struct
def f2u(x): return '0x%08x'%struct.unpack('<I',struct.pack('<f',x))[0]
def V(a,n=1): return f'v{a}' if n==1 else f'v[{a}:{a+n-1}]'
def Ag(a,n=1): return f'a{a}' if n==1 else f'a[{a}:{a+n-1}]'

A=Asm()
nts=[0]
def ts(name):
    if not TS: return
    A.wait_lg0()
    A('s_memtime s[100:101]'); A.wait_lg0()
    A(f'v_writelane_b32 {vTS}, s100, {nts[0]}')
    print(f'ts{nts[0]}: {name}', file=sys.stderr)
    nts[0]+=1

def srd(name,ptr,size):
    b=int(name[2:name.index(':')])
    A(f's_mov_b32 s{b}, s{ptr}\ns_and_b32 s{b+1}, s{ptr+1}, 0xffff\ns_mov_b32 s{b+2}, {size}\ns_mov_b32 s{b+3}, 0x20000')

def fast_slow(fn):
    ls=A.newlabel('L_slow'); lj=A.newlabel('L_join')
    A(f's_cmp_eq_u32 {sFAST}, 0')
    A.raw(f'    s_cbranch_scc1 {ls}')
    n0=len(A.out)
    fn('@SC@')
    body=A.out[n0:]; del A.out[n0:]
    A.out+= [l.replace('@SC@','') for l in body]
    A.raw(f'    s_branch {lj}')
    A.raw(f'{ls}:')
    A.out+= [l.replace('@SC@',' sc1') for l in body]
    A.raw(f'{lj}:')

def publish_flag(phase):
    A.wait_vm0()
    A(f's_lshl_b32 {t0}, {sA16}, 2\ns_add_u32 {t0}, {t0}, {sW}\ns_lshl_b32 {t0}, {t0}, 2\ns_add_u32 {t0}, {t0}, {sCL}')
    A(f'v_mov_b32 v8, {sTAG}\nv_mov_b32 v9, 0')
    A('s_mov_b64 exec, 1')
    fast_slow(lambda f: A(f'buffer_store_dword v8, v9, {WS}, {t0} offen offset:{FLAGS+phase*256}{f}'))
    A('s_mov_b64 exec, -1')

def poll_flags(phase):
    l=A.newlabel('L_poll'); d=A.newlabel('L_pd')
    A(f's_mov_b32 {sCNT}, 0')
    A.label(l)
    A(f'buffer_load_dword v8, {vL4}, {WS}, {sCL} offen offset:{FLAGS+phase*256} sc1')
    A(f's_add_u32 {sCNT}, {sCNT}, 1')
    A.wait_vm0()
    A(f'v_cmp_eq_u32 vcc, {sTAG}, v8')
    A(f's_and_b64 {sP}, vcc, {sMASK}')
    A(f's_cmp_eq_u64 {sP}, {sMASK}')
    A(f's_cbranch_scc1 {d}')
    A(f's_cmp_lt_u32 {sCNT}, 0x80000')
    A(f's_cbranch_scc1 {l}')
    A.label(d)

def dma(voff,srd_,soff,m0val):
    A(f's_mov_b32 m0, {m0val}')
    return A(f'buffer_load_dwordx4 {voff}, {srd_}, {soff} offen lds')

A.raw(f'{NAME}_kernel:')
A('s_cmp_ge_u32 s2, 256')
A('s_cbranch_scc1 L_end')
A('s_load_dwordx16 s[4:19], s[0:1], 0')
A('s_load_dwordx8 s[20:27], s[0:1], 64')
if TS:
    A('s_memtime s[100:101]')
A(f'v_lshrrev_b32 v8, 6, v0\nv_and_b32 {vL}, 63, v0')
A(f'v_readfirstlane_b32 {sW}, v8')
A(f'v_lshlrev_b32 {vL16}, 4, {vL}\nv_lshlrev_b32 {vL4}, 2, {vL}')
A(f's_and_b32 {sX}, s2, 7\ns_lshr_b32 {sA}, s2, 3\ns_lshr_b32 {sRB}, {sA}, 3\ns_and_b32 {sL3}, {sA}, 7\ns_and_b32 {sA16}, {sA}, 15')
A(f's_lshl_b32 {t0}, {sX}, 1\ns_lshr_b32 {t1}, {sA}, 4\ns_add_u32 {t0}, {t0}, {t1}')
A(f's_lshl_b32 {sCL}, {t0}, 20\ns_add_u32 {sCL}, {sCL}, {CL0}')
A(f's_lshl_b32 {sS0}, {sX}, 8\ns_lshl_b32 {t1}, {sRB}, 6\ns_add_u32 {sS0}, {sS0}, {t1}')
A(f's_and_b32 {sM}, {sW}, 1\ns_lshr_b32 {sKH}, {sW}, 1')
for i in range(4):
    A(f's_add_u32 {t0}, {sRB}, {i}\ns_and_b32 {sROT[i]}, {t0}, 3')
A(f'v_lshrrev_b32 v8, 3, {vL}')
A(f'v_and_b32 v9, 7, {vL}')
A(f'v_and_b32 v10, 2, v8')
A(f'v_xor_b32 v9, v9, v10')
A(f'v_lshlrev_b32 v9, 4, v9')
A(f'v_xor_b32 v10, 64, v9')
A(f'v_mul_u32_u24 v11, 6144, v8\nv_add_u32 v4, v11, v9\nv_add_u32 v5, v11, v10')
A(f'v_mul_u32_u24 v11, 3072, v8\nv_add_u32 v6, v11, v9\nv_add_u32 v7, v11, v10')
A.wait_lg0()
if TS:
    A(f'v_writelane_b32 {vTS}, s100, 0'); nts[0]=1; print('ts0: entry',file=sys.stderr)
A(f's_load_dword {sTAG}, s[26:27], 0')
srd(WM,20,512*3072*2); srd(CC,18,1024); srd(X,4,2048*512*2); srd(WQ,6,512*1536*2); srd(WS,26,0x2000000)
A(f's_cmp_ge_u32 {sA}, 24')
A('s_cbranch_scc1 L_nomodld')
A.begin_region()
A(f's_and_b32 {t0}, {sA}, 3')
A(f's_lshl_b32 {t1}, {t0}, 8')
tok_c=A(f'buffer_load_dword v16, {vL4}, {CC}, {t1} offen')
A(f's_lshl_b32 {t1}, {t0}, 7\ns_lshl_b32 {t2}, {sW}, 5\ns_add_u32 {t1}, {t1}, {t2}\ns_mul_i32 {t1}, {t1}, 6144')
A(f's_lshr_b32 {t2}, {sA}, 2\ns_lshl_b32 {t2}, {t2}, 3\ns_add_u32 {t2}, {t2}, {sX}\ns_lshl_b32 {t2}, {t2}, 7')
A(f's_add_u32 {t1}, {t1}, {t2}')
A(f's_lshl_b32 {sM0}, {sW}, 12\ns_add_u32 {sM0}, {sM0}, {SCR}')
for i in range(4):
    tok_wm=dma('v4' if i%2==0 else 'v5',WM,t1,sM0)
    if i<3: A(f's_add_u32 {t1}, {t1}, {8*6144}\ns_add_u32 {sM0}, {sM0}, 1024')
A.end_region()
A.label('L_nomodld')
A(f's_getpc_b64 {sP}')
A.raw('L_pcref:')
A(f's_lshl_b32 {t0}, {sA}, 11')
A(f'v_lshlrev_b32 v8, 7, {vL}\nv_add_u32 v8, {t0}, v8')
A(f'v_min_u32 v8, CODE_BYTES, v8')
A('s_mov_b64 exec, 0xffff')
A(f'global_load_dword v14, v8, {sP}')
A('s_mov_b64 exec, -1')
A(f'v_lshrrev_b32 v8, 4, {vL}\ns_lshl_b32 {t0}, {sW}, 2\nv_add_u32 v8, {t0}, v8\nv_lshlrev_b32 v8, 10, v8')
A(f'v_and_b32 v9, 15, {vL}\nv_lshl_add_u32 v8, v9, 4, v8')
for g in range(5):
    A(f's_add_i32 {t0}, {sS0}, {16*g-16}')
    if g==0: A(f's_max_i32 {t0}, {t0}, 0')
    A(f's_lshl_b32 {t0}, {t0}, 10')
    for a in range(4):
        A(f's_lshl_b32 {t1}, {sROT[a]}, 8\ns_add_u32 {t1}, {t1}, {t0}')
        A(f'buffer_load_dwordx4 {V(176+(g*4+a)*4,4)}, v8, {X}, {t1} offen')
srd(WO,8,512*512*2); srd(WG,12,512*1376*2); srd(WU,14,512*1376*2); srd(WD,16,1376*512*2); srd(OUT,22,2048*512*2)

def wb_stage_dma(st,base):
    A(f's_lshl_b32 {t0}, {sRB}, 1\ns_add_u32 {t0}, {t0}, {st}\ns_and_b32 {t0}, {t0}, 7\ns_lshl_b32 {t0}, {t0}, 6')
    A(f's_lshl_b32 {t1}, {sW}, 4\ns_add_u32 {t0}, {t0}, {t1}\ns_mul_i32 {t0}, {t0}, 3072')
    A(f's_lshl_b32 {t1}, {sL3}, 7\ns_add_u32 {t0}, {t0}, {t1}')
    A(f's_lshl_b32 {sM0}, {sW}, 11\ns_add_u32 {sM0}, {sM0}, {base}')
    tok=None
    for sec in range(3):
        for i in range(2):
            A(f's_add_u32 {t1}, {t0}, {sec*1024+i*8*3072}\ns_add_u32 {t2}, {sM0}, {sec*8192+i*1024}')
            tok=dma('v6' if i==0 else 'v7',WQ,t1,t2)
    return tok
wbtok=[wb_stage_dma(st,st*24576) for st in range(5)]
A.wait_lg0()
A(f's_mul_i32 {sTAG}, {sTAG}, 0x9E3779B1\ns_add_u32 {sTAG}, {sTAG}, 0x7F4A7C15')
for i in range(4):
    A(f's_lshr_b32 {sTB[i]}, {sTAG}, {8*i}\ns_and_b32 {sTB[i]}, {sTB[i]}, 0xff')
A(f'v_lshrrev_b32 v8, 4, {vL}\nv_and_b32 v9, 15, {vL}')
A(f'v_lshrrev_b32 v10, 2, v9\nv_lshl_add_u32 v10, v8, 3, v10\nv_lshlrev_b32 v10, 7, v10')
A(f'v_lshrrev_b32 v11, 3, v9\nv_and_b32 v12, 1, v8\nv_lshl_or_b32 v11, v12, 1, v11\nv_xor_b32 v11, {sW}, v11')
A(f'v_lshl_add_u32 v10, v11, 5, v10\nv_and_b32 v9, 3, v9\nv_lshl_add_u32 v13, v9, 3, v10')
ts('loads issued')
A(f's_getreg_b32 {sFAST}, hwreg(HW_REG_XCC_ID, 0, 4)')
A(f's_cmp_lg_u32 {sW}, 0')
A('s_cbranch_scc1 L_noxcc')
A.begin_region()
A(f'v_mov_b32 v8, {sFAST}\nv_mov_b32 v9, {sTAG}\nv_mov_b32 v10, 0')
A(f's_lshl_b32 {t0}, {sA16}, 3\ns_add_u32 {t0}, {t0}, {sCL}')
A('s_mov_b64 exec, 1')
A(f'buffer_store_dwordx2 v[8:9], v10, {WS}, {t0} offen offset:{XCC} sc1')
A('s_mov_b64 exec, -1')
A.end_region()
A.label('L_noxcc')
A(f's_cmp_ge_u32 {sA}, 24')
A('s_cbranch_scc1 L_nomod')
A.begin_region()
A.region_save=A.region
A.wait_tok(tok_c)
A('v_lshlrev_b32 v17, 16, v16\nv_and_b32 v18, 0xffff0000, v16')
for r in (17,18):
    A(f'v_mul_f32 v{r+2}, {f2u(-LOG2E)}, v{r}')
for r in (19,20): A(f'v_exp_f32 v{r}, v{r}')
for r in (19,20): A(f'v_add_f32 v{r}, 1.0, v{r}')
for r in (19,20): A(f'v_rcp_f32 v{r}, v{r}')
A('v_mul_f32 v17, v17, v19\nv_mul_f32 v18, v18, v20')
A('v_cvt_pk_bf16_f32 v17, v17, v18')
A(f's_lshl_b32 {t0}, {sW}, 8\ns_add_u32 {t0}, {t0}, {CS}')
A(f'v_add_u32 v18, {t0}, {vL4}')
tk=A('ds_write_b32 v18, v17')
A(f'v_lshrrev_b32 v19, 4, {vL}\nv_lshlrev_b32 v19, 4, v19\nv_add_u32 v19, {t0}, v19')
A.wait_tok(tk)
for c in range(4): A(f'ds_read_b128 {V(24+4*c,4)}, v19 offset:{c*64}')
A.wait_tok(tok_wm)
A.barrier()
A(f'v_add_u32 v18, {SCR}, v13')
for c in range(4):
    for rho in range(2):
        A(f'ds_read_b64_tr_b16 {V(40+4*c+2*rho,2)}, v18 offset:{c*4096+rho*512}')
for c in range(4):
    A(f'v_mfma_f32_16x16x32_bf16 v[20:23], {V(40+4*c,4)}, {V(24+4*c,4)}, {"0" if c==0 else "v[20:23]"}')
A('v_mov_b32 v18, 0xffffff00')
A(f's_and_b32 {t0}, {sA}, 3\ns_mul_i32 {t0}, {t0}, 12288')
A(f's_lshr_b32 {t2}, {sA}, 2\ns_lshl_b32 {t2}, {t2}, 3\ns_add_u32 {t2}, {t2}, {sX}\ns_lshl_b32 {t2}, {t2}, 8')
A(f's_add_u32 {t0}, {t0}, {t2}\ns_lshl_b32 {t2}, {sW}, 6\ns_add_u32 {t0}, {t0}, {t2}\ns_add_u32 {t0}, {t0}, {MODP}')
A(f'v_and_b32 v19, 48, {vL}')
for r in range(4): A(f'v_and_or_b32 v{20+r}, v{20+r}, v18, {sTB[r]}')
A('s_mov_b32 exec_lo, 0x00010001\ns_mov_b32 exec_hi, 0x00010001')
A(f'buffer_store_dwordx4 v[20:23], v19, {WS}, {t0} offen sc1')
A('s_mov_b64 exec, -1')
A.end_region()
A.label('L_nomod')
ts('mod published')
A('s_mov_b32 s100, 0x3f803f80')
for g in range(5):
    raw=176+g*16
    A(f'v_dot2_f32_bf16 v8, v{raw}, s100, 0')
    A(f'v_dot2_f32_bf16 v9, v{raw}, v{raw}, 0')
    for j in range(1,16):
        A(f'v_dot2_f32_bf16 v8, v{raw+j}, s100, v8')
        A(f'v_dot2_f32_bf16 v9, v{raw+j}, v{raw+j}, v9')
    for sh in (8,4,2,1):
        A(f'v_add_f32_dpp v8, v8, v8 row_ror:{sh} row_mask:0xf bank_mask:0xf')
        A(f'v_add_f32_dpp v9, v9, v9 row_ror:{sh} row_mask:0xf bank_mask:0xf')
    A(f'v_mul_f32 v8, {f2u(1/512)}, v8')
    A(f'v_mul_f32 v10, v8, v8')
    A(f'v_mul_f32 v9, {f2u(1/512)}, v9')
    A(f'v_sub_f32 v9, v9, v10')
    A(f'v_max_f32 v9, 0, v9')
    A(f'v_add_f32 v9, {f2u(1e-5)}, v9')
    A(f'v_rsq_f32 v10, v9')
    A(f'v_mul_f32 v11, v8, v10')
    A(f'v_sub_f32 v12, 0, v11')
    for j in range(16):
        n=16+g*32+2*j
        A(f'v_lshlrev_b32 v{n}, 16, v{raw+j}\nv_and_b32 v{n+1}, 0xffff0000, v{raw+j}')
        A(f'v_pk_fma_f32 {V(n,2)}, {V(n,2)}, v[10:11], v[12:13] op_sel_hi:[1,0,0]')
ts('LN1 done')
def wb_read(st,base):
    reg='v13' if base<49152 else ('v11' if base<98304 else 'v12')
    off=base%49152
    for cc in range(2):
        for sec in range(3):
            for rho in range(2):
                A(f'ds_read_b64_tr_b16 {Ag((st*2+cc)*12+sec*4+2*rho,2)}, {reg} offset:{off+sec*8192+cc*4096+rho*512}')
A('v_add_u32 v11, 49152, v13\nv_add_u32 v12, 98304, v13')
A.wait_tok(wbtok[4]); A.barrier()
for st in range(5): wb_read(st,st*24576)
A.wait_lg0(); A.barrier()
wbtok=[wb_stage_dma(st,(st-5)*24576) for st in range(5,8)]
A.wait_tok(wbtok[2]); A.barrier()
for st in range(5,8): wb_read(st,(st-5)*24576)
A.wait_lg0()
ts('W_B in regs')
def mod_poll(q):
    l=A.newlabel('L_mp'); d=A.newlabel('L_mpd')
    A(f'v_lshlrev_b32 v8, 4, v0')
    A(f's_mov_b32 {sCNT}, 0\ns_mov_b32 {t0}, {MODP+q*4096}\ns_mov_b32 {t1}, {MODP+q*4096+12288}\ns_mov_b32 {t2}, {MODP+q*4096+2*12288}\ns_mov_b32 {t3}, {MODP+q*4096+3*12288}')
    A('s_mov_b32 s100, 0x0c0c0400\ns_mov_b32 s101, 0x04000c0c')
    A.label(l)
    for kq,t in enumerate((t0,t1,t2,t3)):
        A(f'buffer_load_dwordx4 {V(240+4*kq,4)}, v8, {WS}, {t} offen sc1')
    A(f's_add_u32 {sCNT}, {sCNT}, 1')
    A(f's_mov_b64 {sP}, -1')
    for kq in range(4):
        b=240+4*kq
        A(f'v_perm_b32 v9, v{b+1}, v{b}, s100\nv_perm_b32 v10, v{b+3}, v{b+2}, s101\nv_or_b32 v9, v9, v10')
        A(f'v_cmp_eq_u32 vcc, {sTAG}, v9')
        A(f's_and_b64 {sP}, {sP}, vcc')
    A(f's_cmp_eq_u64 {sP}, -1')
    A(f's_cbranch_scc1 {d}')
    A(f's_cmp_lt_u32 {sCNT}, 0x80000')
    A(f's_cbranch_scc1 {l}')
    A.label(d)
    for r in range(16): A(f'v_and_b32 v{240+r}, 0xffffff00, v{240+r}')
    for r in range(4):
        A(f'v_add_f32 v{240+r}, v{240+r}, v{244+r}\nv_add_f32 v{248+r}, v{248+r}, v{252+r}')
    for r in range(4): A(f'v_add_f32 v{240+r}, v{240+r}, v{248+r}')
    def rnd():
        A('v_cvt_pk_bf16_f32 v244, v240, v241\nv_cvt_pk_bf16_f32 v245, v242, v243')
        A('v_lshlrev_b32 v240, 16, v244\nv_and_b32 v241, 0xffff0000, v244\nv_lshlrev_b32 v242, 16, v245\nv_and_b32 v243, 0xffff0000, v245')
    rnd()
    if q!=1:
        A(f's_cmp_ge_u32 {sW}, 2')
        A(f's_cselect_b32 {t0}, {"1.0, 0" if q==0 else "0, 1.0"}')
        for r in range(4): A(f'v_add_f32 v{240+r}, {t0}, v{240+r}')
        rnd()
    A(f'v_add_u32 v8, {MODT+q*4096}, v8')
    A('ds_write_b128 v8, v[240:243]')
for q in range(3): mod_poll(q)
A.wait_lg0(); A.barrier()
ts('mod arrived')
A(f'v_and_b32 v9, 15, {vL}\nv_lshlrev_b32 v9, 5, v9\nv_add_u32 v9, {MODT}, v9')
for a in range(4):
    A(f's_lshl_b32 {t0}, {sROT[a]}, 9\nv_add_u32 v8, {t0}, v9')
    for hh in range(2):
        A(f'ds_read_b128 {V(208+a*8+4*hh,4)}, v8 offset:{16*hh}')
        A(f'ds_read_b128 {V(176+a*8+4*hh,4)}, v8 offset:{2048+16*hh}')
A(f'v_lshrrev_b32 v8, 4, {vL}\nv_and_b32 v9, 15, {vL}')
A(f'v_lshrrev_b32 v10, 1, v8\ns_lshl_b32 {t0}, {sW}, 1\nv_add_u32 v10, {t0}, v10\nv_and_b32 v11, 7, v9\nv_xor_b32 v10, v10, v11')
A(f'v_lshlrev_b32 v10, 4, v10\nv_lshl_add_u32 v10, v9, 8, v10')
A(f'v_and_b32 v8, 1, v8')
A(f'v_lshl_add_u32 v11, v8, 7, v10')
A(f'v_lshl_add_u32 v12, v8, 14, v10')
for g in range(5):
    for a in range(4):
        n=16+(g*4+a)*8
        for j in range(4):
            A(f'v_pk_fma_f32 {V(n+2*j,2)}, {V(n+2*j,2)}, {V(176+a*8+2*j,2)}, {V(208+a*8+2*j,2)}')
        for j in range(4):
            A(f'v_cvt_pk_bf16_f32 v{n+j}, v{n+2*j}, v{n+2*j+1}')
        if g==0: A(f'ds_write_b128 v11, {V(n,4)} offset:{a*4096}')
        else:
            off=(1+2*((g-1)>>1))*16384+a*4096+((g-1)&1)*128
            A(f'ds_write_b128 v12, {V(n,4)} offset:{off}')
A.wait_lg0(); A.barrier()
ts('H written')
A(f's_and_b32 {t0}, {sRB}, 1\ns_lshl_b32 {sTT}, {t0}, 1')
A(f'v_and_b32 v8, 7, {vL}\nv_lshlrev_b32 v8, 7, v8')
A(f'v_lshrrev_b32 v9, 3, {vL}')
A(f's_lshl_b32 {t0}, {sTT}, 5\ns_lshl_b32 {t1}, {sL3}, 2\ns_add_u32 {t0}, {t0}, {t1}\ns_add_u32 {t0}, {t0}, {sW}\ns_lshl_b32 {t0}, {t0}, 10\ns_add_u32 {t0}, {t0}, {sCL}\ns_add_u32 {t0}, {t0}, {OO}')
A(f'v_lshl_add_u32 v10, v9, 15, v8')
A('s_mov_b64 exec, 0xffff')
A(f'buffer_load_dword v14, v10, {WS}, {t0} offen sc1')
A(f's_add_u32 {t0}, {sTT}, {sM}\ns_lshl_b32 {t0}, {t0}, 5\ns_lshl_b32 {t1}, {sL3}, 2\ns_add_u32 {t0}, {t0}, {t1}\ns_lshl_b32 {t1}, {sKH}, 1\ns_add_u32 {t0}, {t0}, {t1}\ns_lshl_b32 {t0}, {t0}, 10\ns_add_u32 {t0}, {t0}, {sCL}\ns_add_u32 {t0}, {t0}, {ZZ}')
A(f'v_lshlrev_b32 v10, 7, {vL}')
A(f'buffer_load_dword v14, v10, {WS}, {t0} offen sc1')
A(f's_add_u32 {t0}, {sTT}, {sM}\ns_lshl_b32 {t0}, {t0}, 4\ns_lshl_b32 {t1}, {sL3}, 1\ns_add_u32 {t0}, {t0}, {t1}\ns_add_u32 {t0}, {t0}, {sKH}\ns_lshl_b32 {t0}, {t0}, 9\ns_add_u32 {t0}, {t0}, {sCL}\ns_add_u32 {t0}, {t0}, {STATS}')
A('s_mov_b64 exec, 0xf')
A(f'buffer_load_dword v14, v10, {WS}, {t0} offen sc1')
A('s_mov_b64 exec, 0x3f')
A(f'buffer_load_dword v14, v10, {WS}, {sCL} offen offset:{FLAGS} sc1')
A(f's_mul_i32 {t0}, {sW}, 86\ns_mul_i32 {t1}, {sA16}, 6\ns_add_u32 {t0}, {t0}, {t1}\ns_lshl_b32 {t0}, {t0}, 10\ns_add_u32 {t0}, {t0}, {sCL}\ns_add_u32 {t0}, {t0}, {HH}')
A('s_mov_b32 exec_lo, -1\ns_mov_b32 exec_hi, 0xffff')
A(f'buffer_load_dword v14, v10, {WS}, {t0} offen sc1')
A('s_mov_b64 exec, -1')
A(f'v_and_b32 v10, 15, {vL}\nv_lshlrev_b32 v10, 3, v10')
A(f'buffer_load_dwordx2 v[126:127], v10, {WS}, {sCL} offen offset:{XCC} sc1')
A(f'v_lshrrev_b32 v8, 4, {vL}\nv_and_b32 v9, 15, {vL}')
A(f'v_xor_b32 v10, v9, v8\nv_lshlrev_b32 v10, 4, v10\nv_lshl_add_u32 v4, v8, 8, v10')
A(f'v_xor_b32 v5, 64, v4')
A(f'v_add_u32 v6, 65536, v4\nv_add_u32 v7, 65536, v5')
accQ=lambda T:16+(T-1)*4
accK=lambda T:32+T*4
accV=lambda T:52+T*4
def breads(sg):
    buf=72+(sg&1)*20
    for T in range(5):
        if T<4: A(f'ds_read_b128 {V(buf+4*T,4)}, {"v4" if sg%2==0 else "v5"} offset:{T*16384+sg*1024}')
        else:   A(f'ds_read_b128 {V(buf+4*T,4)}, {"v6" if sg%2==0 else "v7"} offset:{sg*1024}')
breads(0)
for sg in range(16):
    if sg<15: breads(sg+1)
    buf=72+(sg&1)*20
    for T in range(5):
        h=V(buf+4*T,4)
        c=lambda r: '0' if sg==0 else V(r,4)
        A(f'v_mfma_f32_16x16x32_bf16 {V(accK(T),4)}, {Ag(sg*12+4,4)}, {h}, {c(accK(T))}')
        A(f'v_mfma_f32_16x16x32_bf16 {V(accV(T),4)}, {h}, {Ag(sg*12+8,4)}, {c(accV(T))}')
        if T>0: A(f'v_mfma_f32_16x16x32_bf16 {V(accQ(T),4)}, {Ag(sg*12,4)}, {h}, {c(accQ(T))}')
A.barrier()
ts('GEMM B done')
A(f'v_cmp_eq_u32 vcc, {sTAG}, v127\ns_mov_b64 {sP}, vcc')
A(f'v_cmp_eq_u32 vcc, {sFAST}, v126\ns_and_b64 {sP}, {sP}, vcc')
A(f's_cmp_eq_u64 {sP}, -1\ns_cselect_b32 {sFAST}, 1, 0')
if '--slow' in sys.argv: A(f's_mov_b32 {sFAST}, 0')
A(f'v_lshrrev_b32 v8, 3, {vL}\nv_and_b32 v9, 7, {vL}\nv_and_b32 v10, 2, v8\nv_lshlrev_b32 v10, 1, v10\nv_xor_b32 v9, v9, v10')
A(f'v_lshlrev_b32 v9, 4, v9\nv_lshl_add_u32 v4, v8, 10, v9')
A(f'v_lshrrev_b32 v8, 2, {vL}\nv_mul_u32_u24 v8, 2752, v8\nv_and_b32 v9, 3, {vL}\nv_lshlrev_b32 v9, 4, v9\nv_add_u32 v5, v8, v9\nv_xor_b32 v9, 32, v9\nv_add_u32 v6, v8, v9')
def w128_dma(srd_,row0,nrows,ldsbase):
    n=nrows//8; tok=None
    A(f's_lshl_b32 {t0}, {sW}, 13\ns_lshl_b32 {t1}, {sL3}, 7\ns_add_u32 {t0}, {t0}, {t1}\ns_add_u32 {t0}, {t0}, {row0*1024}')
    A(f's_lshl_b32 {sM0}, {sW}, 10\ns_add_u32 {sM0}, {sM0}, {ldsbase}')
    for i in range((n+3)//4):
        part = (i*4+4>n)
        if part:
            lab=A.newlabel('L_dp')
            A(f's_cmp_ge_u32 {sW}, {n-i*4}'); A(f's_cbranch_scc1 {lab}'); A.begin_region()
        tk=dma('v4',srd_,t0,sM0)
        if part: A.end_region(); A.label(lab)
        tok=(tok or [])+[tk]
        A(f's_add_u32 {t0}, {t0}, {32*1024}\ns_add_u32 {sM0}, {sM0}, 4096')
    return tok
def wd_dma(p,ldsbase):
    A(f's_mul_i32 {t0}, {sA16}, 192\ns_add_u32 {t0}, {t0}, {p*64}\ns_mul_i32 {t1}, {sW}, {16*2752}\ns_add_u32 {t0}, {t0}, {t1}')
    A(f's_lshl_b32 {sM0}, {sW}, 10\ns_add_u32 {sM0}, {sM0}, {ldsbase}')
    for i in range(8):
        dma('v5',WG,t0,sM0)
        A(f's_add_u32 {t2}, {sM0}, 32768')
        tk=dma('v6',WU,t0,t2)
        A(f's_add_u32 {t0}, {t0}, {64*2752}\ns_add_u32 {sM0}, {sM0}, 4096')
    return tk
tok_wc=w128_dma(WO,0,512,0)
NEG=f2u(-1e30)
A(f'v_lshrrev_b32 v8, 4, {vL}\nv_lshlrev_b32 v8, 2, v8\nv_and_b32 v9, 15, {vL}\nv_mov_b32 v10, {NEG}')
A(f's_cmp_eq_u32 {sS0}, 0\ns_cselect_b32 {t0}, 64, 0')
for r in range(4):
    A(f'v_add_u32 v11, {r}, v8')
    A(f'v_sub_u32 v12, v9, v11')
    A(f'v_cmp_gt_u32 vcc, 8, v12\nv_cndmask_b32 v{112+r}, v10, 0, vcc'.replace('v10, 0, vcc','v10, 0, vcc').replace('v_cndmask_b32','v_cndmask_b32_e64'))
    A(f'v_add_u32 v12, 9, v9\nv_cmp_ge_u32 vcc, v11, v12\nv_cndmask_b32_e64 v{116+r}, v10, 0, vcc')
    A(f'v_add_u32 v12, {t0}, v12\nv_cmp_ge_u32 vcc, v11, v12\nv_cndmask_b32_e64 v{124+r}, v10, 0, vcc')
    A(f'v_add_u32 v12, -8, v12\nv_cmp_ge_u32 vcc, v11, v12\nv_cndmask_b32_e64 v{120+r}, v10, 0, vcc')
    A(f'v_cmp_gt_u32 vcc, 8, v11\nv_cndmask_b32_e64 v{120+r}, v10, v{120+r}, vcc')
for T in range(1,5):
    for j in range(2): A(f'v_cvt_pk_bf16_f32 v{72+2*(T-1)+j}, v{accQ(T)+2*j}, v{accQ(T)+2*j+1}')
for T in range(5):
    for j in range(2): A(f'v_cvt_pk_bf16_f32 v{80+2*T+j}, v{accK(T)+2*j}, v{accK(T)+2*j+1}')
vpos={(0,0):90,(0,1):96,1:92,3:94,2:98,4:100}
for T in range(5):
    for d in ([90,96] if T==0 else [vpos[T]]):
        for j in range(2): A(f'v_cvt_pk_bf16_f32 v{d+j}, v{accV(T)+2*j}, v{accV(T)+2*j+1}')
for r in range(4): A(f'v_mov_b32 v{104+r}, 0x3f803f80')
prevT={1:0,2:0,3:1,4:2}; pmask={1:120,2:124,3:116,4:116}
for T in range(1,5):
    s=16+8*(T-1); q=V(72+2*(T-1),2)
    A(f'v_mfma_f32_16x16x16_bf16 {V(s,4)}, {V(80+2*prevT[T],2)}, {q}, {V(pmask[T],4)}')
    A(f'v_mfma_f32_16x16x16_bf16 {V(s+4,4)}, {V(80+2*T,2)}, {q}, v[112:115]')
SC=0.25*LOG2E
A(f's_mov_b32 s100, {f2u(SC)}')
for T in range(1,5):
    s=16+8*(T-1); m=48+2*(T-1)
    A(f'v_max3_f32 v{m}, v{s}, v{s+1}, v{s+2}\nv_max3_f32 v{m+1}, v{s+3}, v{s+4}, v{s+5}')
    A(f'v_max3_f32 v{m}, v{m}, v{s+6}, v{s+7}\nv_max_f32 v{m}, v{m}, v{m+1}')
for sw in ('v_permlane16_swap_b32','v_permlane32_swap_b32'):
    for T in range(1,5): A(f'v_mov_b32 v{49+2*(T-1)}, v{48+2*(T-1)}')
    for T in range(1,5): A(f'{sw} v{48+2*(T-1)}, v{49+2*(T-1)}')
    for T in range(1,5): A(f'v_max_f32 v{48+2*(T-1)}, v{48+2*(T-1)}, v{49+2*(T-1)}')
for T in range(1,5): A(f'v_mul_f32 v{48+2*(T-1)}, s100, v{48+2*(T-1)}')
for T in range(1,5):
    s=16+8*(T-1); m=48+2*(T-1)
    for r in range(8): A(f'v_fma_f32 v{s+r}, v{s+r}, s100, -v{m}')
    for r in range(8): A(f'v_exp_f32 v{s+r}, v{s+r}')
    for j in range(4): A(f'v_cvt_pk_bf16_f32 v{s+j}, v{s+2*j}, v{s+2*j+1}')
vch={1:90,3:92,2:96,4:98}
for T in range(1,5):
    s=16+8*(T-1)
    A(f'v_mfma_f32_16x16x32_bf16 {V(56+4*(T-1),4)}, {V(vch[T],4)}, {V(s,4)}, 0')
    A(f'v_mfma_f32_16x16x32_bf16 {V(s+4,4)}, v[104:107], {V(s,4)}, 0')
for T in range(1,5): A(f'v_rcp_f32 v{16+8*(T-1)+4}, v{16+8*(T-1)+4}')
for T in range(1,5):
    o=56+4*(T-1)
    for r in range(4): A(f'v_mul_f32 v{o+r}, v{o+r}, v{16+8*(T-1)+4}')
for T in range(1,5):
    o=56+4*(T-1); d=72+2*(T-1)
    A(f'v_cvt_pk_bf16_f32 v{d}, v{o}, v{o+1}\nv_cvt_pk_bf16_f32 v{d+1}, v{o+2}, v{o+3}')
for m in range(2):
    A(f'v_permlane16_swap_b32 v{72+4*m}, v{74+4*m}\nv_permlane16_swap_b32 v{73+4*m}, v{75+4*m}')
A(f's_lshl_b32 {t0}, {sTT}, 5\ns_lshl_b32 {t1}, {sL3}, 2\ns_add_u32 {t0}, {t0}, {t1}\ns_add_u32 {t0}, {t0}, {sW}\ns_lshl_b32 {t0}, {t0}, 10\ns_add_u32 {t0}, {t0}, {sCL}\ns_add_u32 {t0}, {t0}, {OO}\ns_add_u32 {t1}, {t0}, 32768')
A.nop(2)
def st_o(f):
    A(f'buffer_store_dwordx4 v[72:75], {vL16}, {WS}, {t0} offen{f}')
    A(f'buffer_store_dwordx4 v[76:79], {vL16}, {WS}, {t1} offen{f}')
fast_slow(st_o)
ts('attn done')
publish_flag(0)
ts('B published')
A(f's_add_u32 {t0}, s2, {sW}\ns_cmp_lg_u32 {t0}, 0')
A('s_cbranch_scc1 L_noep')
A.begin_region()
A(f'v_lshrrev_b32 v8, 4, {vL}\nv_lshlrev_b32 v8, 20, v8\nv_and_b32 v9, 15, {vL}\nv_lshl_add_u32 v8, v9, 3, v8')
A(f's_mov_b32 {sCNT}, 0')
A.label('L_ep')
A(f's_mov_b64 {sP}, -1')
for i in range(4):
    A(f's_mov_b32 {t0}, {CL0+i*4*CLS+XCC+4}')
    A(f'buffer_load_dword v{16+i}, v8, {WS}, {t0} offen sc1')
for i in range(4):
    A(f'v_cmp_eq_u32 vcc, {sTAG}, v{16+i}\ns_and_b64 {sP}, {sP}, vcc')
A(f's_add_u32 {sCNT}, {sCNT}, 1')
A(f's_cmp_eq_u64 {sP}, -1\ns_cbranch_scc1 L_epd\ns_cmp_lt_u32 {sCNT}, 0x80000\ns_cbranch_scc1 L_ep')
A.label('L_epd')
A(f'v_mov_b32 v8, {sTAG}\nv_mov_b32 v9, 0\ns_mov_b64 exec, 1')
A(f'buffer_store_dword v8, v9, {WS}, 0 offen sc1')
A('s_mov_b64 exec, -1')
A.end_region()
A.label('L_noep')
def base128(dst,hshift):
    A(f'v_lshrrev_b32 v8, 5, {vL}\nv_and_b32 v9, 15, {vL}\nv_lshrrev_b32 v10, 2, v9\nv_lshl_add_u32 v10, v8, {hshift}, v10\nv_lshlrev_b32 v10, 7, v10')
    A(f'v_lshrrev_b32 v11, 3, v9\nv_xor_b32 v11, {sKH}, v11\nv_lshl_add_u32 v10, v11, 6, v10')
    A(f'v_bfe_u32 v11, {vL}, 4, 1\nv_lshl_add_u32 v10, v11, 5, v10\nv_and_b32 v9, 3, v9\nv_lshl_add_u32 v{dst}, v9, 3, v10')
base128(12,3)
A(f's_lshl_b32 {t0}, {sKH}, 15\nv_add_u32 v12, {t0}, v12\nv_xor_b32 v13, 64, v12')
A.barrier()
for i in range(16):
    for s in range(2):
        for rho in range(2):
            A(f'ds_read_b64_tr_b16 {Ag((i*2+s)*4+2*rho,2)}, v{12+s} offset:{i*2048+rho*512}')
A(f's_lshl_b32 {t0}, {sL3}, 8\ns_lshl_b32 {t1}, {sKH}, 7\ns_add_u32 {t0}, {t0}, {t1}\ns_add_u32 {t0}, {t0}, {MODT}')
A(f'v_lshrrev_b32 v8, 5, {vL}\nv_lshlrev_b32 v8, 4, v8\nv_add_u32 v11, {t0}, v8')
for q in range(4):
    A(f'ds_read_b128 {V(136+4*q,4)}, v11 offset:{2*2048+q*32}')
    A(f'ds_read_b128 {V(152+4*q,4)}, v11 offset:{4*2048+q*32}')
    A(f'ds_read_b128 {V(168+4*q,4)}, v11 offset:{3*2048+q*32}')
A(f'v_and_b32 v8, 15, {vL}\nv_bfe_u32 v9, {vL}, 4, 1\nv_lshl_add_u32 v8, v8, 1, v9\nv_lshlrev_b32 v8, 10, v8\nv_lshrrev_b32 v9, 5, {vL}\nv_lshl_add_u32 v10, v9, 3, v8')
A(f's_lshl_b32 {t0}, {sM}, 5\ns_add_u32 {t0}, {t0}, {sS0}\ns_lshl_b32 {t0}, {t0}, 10\ns_lshl_b32 {t1}, {sL3}, 7\ns_add_u32 {t0}, {t0}, {t1}\ns_lshl_b32 {t1}, {sKH}, 6\ns_add_u32 {sOFF}, {t0}, {t1}')
for q in range(4):
    A(f'buffer_load_dwordx2 {V(128+2*q,2)}, v10, {X}, {sOFF} offen offset:{q*16}')
A.wait_lg0(); A.barrier()
tok_p0=wd_dma(0,0)
tok_p1=wd_dma(1,65536)
A(f's_and_b32 {t0}, {sRB}, 1\ns_lshl_b32 {t0}, {t0}, 5\ns_lshl_b32 {t1}, {sKH}, 4\ns_add_u32 {t0}, {t0}, {t1}\ns_mov_b64 {sP}, 0xffff\ns_lshl_b64 {sMASK}, {sP}, {t0}')
ts('C poll start')
poll_flags(0)
ts('C poll done')
A(f's_add_u32 {t0}, {sTT}, {sM}\ns_lshl_b32 {t0}, {t0}, 5\ns_lshl_b32 {t1}, {sKH}, 4\ns_add_u32 {t0}, {t0}, {t1}\ns_lshl_b32 {t0}, {t0}, 10\ns_add_u32 {t0}, {t0}, {sCL}\ns_add_u32 {t0}, {t0}, {OO}')
for i in range(16):
    A(f'buffer_load_dwordx4 {V(16+4*i,4)}, {vL16}, {WS}, {t0} offen offset:{(i%4)*1024} sc1')
    if i%4==3: A(f's_add_u32 {t0}, {t0}, 4096')
for i in range(16):
    for s in range(2):
        acc=V(80+16*s,16)
        A(f'v_mfma_f32_32x32x16_bf16 {acc}, {Ag((i*2+s)*4,4)}, {V(16+4*i,4)}, {"0" if i==0 else acc}')
def kreduce(own,other,recv):
    A(f's_lshl_b32 {t0}, {sW}, 12\ns_add_u32 {t0}, {t0}, {SCR}\nv_add_u32 v8, {t0}, {vL16}\nv_xor_b32 v9, 8192, v8')
    for q in range(4): A(f'ds_write_b128 v8, {V(other+4*q,4)} offset:{q*1024}')
    A.wait_lg0(); A.barrier()
    for q in range(4): A(f'ds_read_b128 {V(recv+4*q,4)}, v9 offset:{q*1024}')
    for r in range(16): A(f'v_add_f32 v{own+r}, v{own+r}, v{recv+r}')
assert SCR%16384==0
kreduce(80,96,112)
ts('C gemm done')
for q in range(4):
    for j in range(2):
        A(f'v_lshlrev_b32 v{112+4*q+2*j}, 16, v{128+2*q+j}\nv_and_b32 v{113+4*q+2*j}, 0xffff0000, v{128+2*q+j}')
for r in range(16): A(f'v_fma_f32 v{80+r}, v{80+r}, v{136+r}, v{112+r}')
for j in range(8): A(f'v_cvt_pk_bf16_f32 v{96+j}, v{80+2*j}, v{81+2*j}')
A('s_mov_b32 s100, 0x3f803f80')
for j in range(8):
    A(f'v_dot2_f32_bf16 v104, v{96+j}, s100, {"0" if j==0 else "v104"}')
    A(f'v_dot2_f32_bf16 v106, v{96+j}, v{96+j}, {"0" if j==0 else "v106"}')
for j in range(8): A(f'v_lshlrev_b32 v{240+2*j}, 16, v{96+j}\nv_and_b32 v{241+2*j}, 0xffff0000, v{96+j}')
A('v_mov_b32 v105, v104\nv_mov_b32 v107, v106')
A('v_permlane32_swap_b32 v104, v105\nv_permlane32_swap_b32 v106, v107')
A('v_add_f32 v104, v104, v105\nv_add_f32 v106, v106, v107')
A(f'v_mov_b32 v105, {sTAG}\nv_mov_b32 v107, {sTAG}')
A(f's_add_u32 {t0}, {sTT}, {sM}\ns_lshl_b32 {t0}, {t0}, 13\ns_add_u32 {t0}, {t0}, {sCL}\ns_add_u32 {t0}, {t0}, {STATS}')
A(f's_lshl_b32 {t1}, {sL3}, 1\ns_add_u32 {t1}, {t1}, {sKH}\ns_lshl_b32 {t1}, {t1}, 9\ns_add_u32 {t1}, {t1}, {t0}')
A('s_mov_b64 exec, 0xffffffff')
fast_slow(lambda f: A(f'buffer_store_dwordx4 v[104:107], {vL16}, {WS}, {t1} offen{f}'))
A('s_mov_b64 exec, -1')
A(f'v_and_b32 v8, 31, {vL}\nv_lshlrev_b32 v8, 4, v8\nv_lshrrev_b32 v9, 5, {vL}\nv_lshl_add_u32 v8, v9, 12, v8')
A(f's_mov_b32 {sCNT}, 0')
A.label('L_st')
for i in range(8): A(f'buffer_load_dwordx4 {V(184+4*i,4)}, v8, {WS}, {t0} offen offset:{i*512} sc1')
A(f's_add_u32 {sCNT}, {sCNT}, 1\ns_mov_b64 {sP}, -1')
for i in range(8):
    A(f'v_cmp_eq_u32 vcc, {sTAG}, v{185+4*i}\ns_and_b64 {sP}, {sP}, vcc\nv_cmp_eq_u32 vcc, {sTAG}, v{187+4*i}\ns_and_b64 {sP}, {sP}, vcc')
A(f's_cmp_eq_u64 {sP}, -1\ns_cbranch_scc1 L_std\ns_cmp_lt_u32 {sCNT}, 0x80000\ns_cbranch_scc1 L_st')
A.label('L_std')
for i in range(1,8): A(f'v_add_f32 v184, v184, v{184+4*i}\nv_add_f32 v186, v186, v{186+4*i}')
A('v_mov_b32 v185, v184\nv_mov_b32 v187, v186')
A('v_permlane32_swap_b32 v184, v185\nv_permlane32_swap_b32 v186, v187')
A('v_add_f32 v184, v184, v185\nv_add_f32 v186, v186, v187')
A(f'v_mul_f32 v184, {f2u(1/512)}, v184\nv_mul_f32 v185, v184, v184\nv_mul_f32 v186, {f2u(1/512)}, v186\nv_sub_f32 v186, v186, v185\nv_max_f32 v186, 0, v186')
A(f'v_add_f32 v186, {f2u(1e-5)}, v186\nv_rsq_f32 v186, v186\nv_mul_f32 v184, v184, v186')
for r in range(16): A(f'v_fma_f32 v{80+r}, v{240+r}, v186, -v184')
for r in range(16): A(f'v_fma_f32 v{80+r}, v{80+r}, v{152+r}, v{168+r}')
for j in range(8): A(f'v_cvt_pk_bf16_f32 v{96+j}, v{80+2*j}, v{81+2*j}')
A(f's_add_u32 {t0}, {sTT}, {sM}\ns_lshl_b32 {t0}, {t0}, 5\ns_lshl_b32 {t1}, {sL3}, 2\ns_add_u32 {t0}, {t0}, {t1}\ns_lshl_b32 {t1}, {sKH}, 1\ns_add_u32 {t0}, {t0}, {t1}\ns_lshl_b32 {t0}, {t0}, 10\ns_add_u32 {t0}, {t0}, {sCL}\ns_add_u32 {t0}, {t0}, {ZZ}')
def st_z(f):
    A(f'buffer_store_dwordx4 v[96:99], {vL16}, {WS}, {t0} offen{f}')
    A(f'buffer_store_dwordx4 v[100:103], {vL16}, {WS}, {t0} offen offset:1024{f}')
fast_slow(st_z)
ts('C epilogue done')
publish_flag(1)
A(f's_mov_b32 s100, 0x55555555\ns_mov_b32 s101, 0\ns_lshl_b32 {t0}, {sKH}, 5\ns_add_u32 {t0}, {t0}, {sM}\ns_lshl_b64 {sMASK}, s[100:101], {t0}')
A(f'v_lshrrev_b32 v8, 5, {vL}\nv_and_b32 v9, 15, {vL}\nv_lshrrev_b32 v10, 2, v9\nv_lshl_add_u32 v10, v8, 2, v10\nv_lshlrev_b32 v10, 6, v10')
A(f'v_bfe_u32 v11, {vL}, 4, 1\nv_mul_u32_u24 v11, 32800, v11\nv_add_u32 v10, v10, v11\nv_and_b32 v9, 3, v9\nv_lshl_add_u32 v10, v9, 3, v10')
A('v_xor_b32 v11, 32, v10\nv_add_u32 v12, 65536, v10\nv_add_u32 v13, 65536, v11')
ts('D poll start')
poll_flags(1)
ts('D poll done')
A(f's_lshl_b32 {t0}, {sW}, 15\ns_add_u32 {t0}, {t0}, {sCL}\ns_add_u32 {t0}, {t0}, {ZZ}')
for i in range(32):
    A(f'buffer_load_dwordx4 {Ag(4*i,4)}, {vL16}, {WS}, {t0} offen offset:{(i%4)*1024} sc1')
    if i%4==3: A(f's_add_u32 {t0}, {t0}, 4096')
A.barrier()
def d_pair(p,slot):
    base=10+2*slot
    NB=8
    seq=[(m,hf) for m in range(32) for hf in range(2)]
    def rd(k):
        m,hf=seq[k]; b=112+4*(k%NB)
        for rho in range(2):
            A(f'ds_read_b64_tr_b16 {V(b+2*rho,2)}, v{base+hf} offset:{m*1024+rho*512}')
    PF=4
    for k in range(PF): rd(k)
    for k,(m,hf) in enumerate(seq):
        if k+PF<len(seq): rd(k+PF)
        acc=V(16+16*hf,16)
        A(f'v_mfma_f32_32x32x16_bf16 {acc}, {V(112+4*(k%NB),4)}, {Ag(4*m,4)}, {"0" if m==0 else acc}')
    A(f's_mul_i32 {t1}, {sA16}, 6\ns_add_u32 {t1}, {t1}, {2*p}\ns_cmp_lt_u32 {t1}, 86')
    A(f's_mul_i32 {t0}, {sW}, 86\ns_cselect_b32 {t2}, 0, {DUMMY-HH}\ns_cselect_b32 {t0}, {t0}, 0\ns_cselect_b32 {t1}, {t1}, 0')
    A(f's_add_u32 {t0}, {t0}, {t1}\ns_lshl_b32 {t0}, {t0}, 10\ns_add_u32 {t0}, {t0}, {sCL}\ns_add_u32 {t0}, {t0}, {t2}\ns_add_u32 {t0}, {t0}, {HH}')
    for hf in range(2):
        a=16+16*hf
        for r in range(8): A(f'v_mul_f32 v{a+r}, {f2u(-LOG2E)}, v{a+r}')
        for r in range(8): A(f'v_exp_f32 v{a+r}, v{a+r}')
        for r in range(8): A(f'v_add_f32 v{a+r}, 1.0, v{a+r}')
        for r in range(8): A(f'v_rcp_f32 v{a+r}, v{a+r}')
        for r in range(8): A(f'v_mul_f32 v{a+r}, v{a+r}, v{a+8+r}')
        for j in range(4): A(f'v_cvt_pk_bf16_f32 v{48+4*hf+j}, v{a+2*j}, v{a+2*j+1}')
    def st(f):
        A(f'buffer_store_dwordx4 v[48:51], {vL16}, {WS}, {t0} offen{f}')
        A(f'buffer_store_dwordx4 v[52:55], {vL16}, {WS}, {t0} offen offset:1024{f}')
    fast_slow(st)
d_pair(0,0)
A.barrier()
tok_p2=wd_dma(2,0)
d_pair(1,1)
A.wait_tok(tok_p2)
A.barrier()
tokE1=w128_dma(WD,688,512,65536)
d_pair(2,0)
ts('D done')
publish_flag(2)
A.barrier()
tokE0=w128_dma(WD,0,512,0)
A(f's_cmp_eq_u32 {sKH}, 0\ns_cselect_b32 s100, 0x11111111, 0x10000000\ns_cselect_b32 s101, 0, 0x01111111'.replace('s_cselect_b32 s100, 0x11111111, 0x10000000',f's_mov_b32 {t1}, 0x10000000\ns_cselect_b32 s100, 0x11111111, {t1}'))
A(f's_add_u32 {t0}, {sTT}, {sM}\ns_lshl_b64 {sMASK}, s[100:101], {t0}')
base128(12,2)
A(f's_lshl_b32 {t0}, {sKH}, 16\nv_add_u32 v12, {t0}, v12\nv_xor_b32 v13, 64, v12')
A(f's_lshl_b32 {t0}, {sL3}, 8\ns_lshl_b32 {t1}, {sKH}, 7\ns_add_u32 {t0}, {t0}, {t1}\ns_add_u32 {t0}, {t0}, {MODT}')
A(f'v_lshrrev_b32 v8, 5, {vL}\nv_lshlrev_b32 v8, 4, v8\nv_add_u32 v11, {t0}, v8')
for q in range(4): A(f'ds_read_b128 {V(96+4*q,4)}, v11 offset:{5*2048+q*32}')
ts('E poll start')
poll_flags(2)
ts('E poll done')
A(f's_add_u32 {t0}, {sTT}, {sM}\ns_mul_i32 {t0}, {t0}, 86\ns_mul_i32 {t1}, {sKH}, 43\ns_add_u32 {t0}, {t0}, {t1}\ns_lshl_b32 {t0}, {t0}, 10\ns_add_u32 {t0}, {t0}, {sCL}\ns_add_u32 {t0}, {t0}, {HH}')
for i in range(43):
    A(f'buffer_load_dwordx4 {Ag(4*i,4)}, {vL16}, {WS}, {t0} offen offset:{(i%4)*1024} sc1')
    if i%4==3: A(f's_add_u32 {t0}, {t0}, 4096')
A.barrier()
def e_round(i0,i1):
    NB=8
    seq=[(i,s) for i in range(i0,i1) for s in range(2)]
    def rd(k):
        i,s=seq[k]; b=48+4*(k%NB)
        for rho in range(2):
            A(f'ds_read_b64_tr_b16 {V(b+2*rho,2)}, v{12+s} offset:{(i-i0)*2048+rho*1024}')
    PF=4
    for k in range(PF): rd(k)
    for k,(i,s) in enumerate(seq):
        if k+PF<len(seq): rd(k+PF)
        acc=V(16+16*s,16)
        A(f'v_mfma_f32_32x32x16_bf16 {acc}, {V(48+4*(k%NB),4)}, {Ag(4*i,4)}, {"0" if i==0 else acc}')
e_round(0,32)
A.barrier()
w128_dma(WD,512,176,0)
w128_dma(WD,688+512,176,65536)
A.wait_vm0(); A.barrier()
e_round(32,43)
kreduce(16,32,80)
ts('E gemm done')
for r in range(16): A(f'v_fma_f32 v{16+r}, v{16+r}, v{96+r}, v{240+r}')
for j in range(8): A(f'v_cvt_pk_bf16_f32 v{32+j}, v{16+2*j}, v{17+2*j}')
for pr in range(2):
    A(f'v_permlane32_swap_b32 v{32+4*pr}, v{34+4*pr}\nv_permlane32_swap_b32 v{33+4*pr}, v{35+4*pr}')
A(f'v_and_b32 v8, 15, {vL}\nv_bfe_u32 v9, {vL}, 4, 1\nv_lshl_add_u32 v8, v8, 1, v9\nv_lshlrev_b32 v8, 10, v8\nv_lshrrev_b32 v9, 5, {vL}\nv_lshl_add_u32 v10, v9, 4, v8')
A(f'buffer_store_dwordx4 v[32:35], v10, {OUT}, {sOFF} offen')
A(f'buffer_store_dwordx4 v[36:39], v10, {OUT}, {sOFF} offen offset:32')
if TS:
    A.wait_vm0()
    ts('end')
    A('s_memrealtime s[100:101]'); A.wait_lg0()
    A(f'v_writelane_b32 {vTS}, s100, 63')
    A(f'v_writelane_b32 {vTS}, {sFAST}, 62')
    A(f's_lshl_b32 {t0}, s2, 2\ns_add_u32 {t0}, {t0}, {sW}\ns_lshl_b32 {t0}, {t0}, 8\ns_add_u32 {t0}, {t0}, {TSOFF}')
    A(f'buffer_store_dword {vTS}, {vL4}, {WS}, {t0} offen')
A.raw('L_end:')
A.raw('    s_endpgm')
A.raw('L_codeend:')

hdr=open('cdna_kernels/'+NAME+'.s.ref').read().split('\n')
head=[l for l in hdr if l.startswith(';') and '@launch' not in l and 'Override launch' not in l and 'grid=ceil' not in l]
o='\n'.join(head)+'\n; @launch grid=(256,1,1) block=(256,1,1) lds=163840\n'
o+='.amdgcn_target "amdgcn-amd-amdhsa--gfx950"\n.text\n.globl '+NAME+'_kernel\n.p2align 8\n.type '+NAME+'_kernel,@function\n'
o+=A.text()
o+=f'''.section .rodata,"a"
.p2align 6
.amdhsa_kernel {NAME}_kernel
  .amdhsa_next_free_vgpr 512
  .amdhsa_next_free_sgpr 102
  .amdhsa_accum_offset 256
  .amdhsa_group_segment_fixed_size 0
  .amdhsa_kernarg_size 96
  .amdhsa_user_sgpr_count 2
  .amdhsa_user_sgpr_kernarg_segment_ptr 1
  .amdhsa_system_sgpr_workgroup_id_x 1
.end_amdhsa_kernel
'''
out=[a for a in sys.argv[1:] if not a.startswith('--')]
fn=out[0] if out else 'k.s'
import subprocess,re
open(fn,'w').write(o.replace('CODE_BYTES','0x12345'))
r=subprocess.run(['clang','-x','assembler','-target','amdgcn-amd-amdhsa','-mcpu=gfx950','-c',fn,'-o','_g.o'],capture_output=True,text=True)
if r.returncode: print(r.stderr[:3000]); sys.exit(1)
sy=subprocess.run(['llvm-readelf','-s','_g.o'],capture_output=True,text=True).stdout
ad=lambda n:int(re.search(r'([0-9a-f]{16})\s+\d+\s+\w+\s+\w+\s+\w+\s+\w+\s+'+n+r'\n',sy).group(1),16)
cb=ad('L_codeend')-ad('L_pcref')-4
open(fn,'w').write(o.replace('CODE_BYTES',hex(cb)))
print('code bytes',ad('L_codeend'),file=sys.stderr)
print('nops inserted',A.nnop,file=sys.stderr)
```

```python
import re
REG = re.compile(r'^(-?)(?:abs\()?([vas])(?:(\d+)|\[(\d+):(\d+)\])\)?$')
def regs_of(tok):
    tok = tok.strip()
    if tok in ('vcc',): return [('s',106),('s',107)]
    if tok == 'vcc_lo': return [('s',106)]
    if tok == 'vcc_hi': return [('s',107)]
    if tok == 'exec': return [('s',126),('s',127)]
    if tok == 'm0': return [('s',124)]
    m = REG.match(tok)
    if not m: return []
    f = m.group(2)
    if m.group(3) is not None: return [(f,int(m.group(3)))]
    return [(f,i) for i in range(int(m.group(4)), int(m.group(5))+1)]

TRANS = ('v_exp_f32','v_log_f32','v_rcp_f32','v_rsq_f32','v_sqrt_f32','v_sin_f32','v_cos_f32')
class I:
    __slots__=('text','op','dst','src','kind','srcC','passes','sgsrc','lds','wide','dpp')
def split_ops(s):
    out=[];d=0;cur=''
    for ch in s:
        if ch in '[(': d+=1
        if ch in '])': d-=1
        if ch==',' and d==0: out.append(cur.strip());cur=''
        else: cur+=ch
    if cur.strip(): out.append(cur.strip())
    return out
def parse(text):
    i=I(); i.text=text
    parts=text.split(None,1); op=parts[0]; i.op=op
    rest=parts[1] if len(parts)>1 else ''
    ops=split_ops(rest)
    mods=''
    if ops:
        lp=ops[-1].split(None,1)
        ops[-1]=lp[0]; mods=lp[1] if len(lp)>1 else ''
    R=[regs_of(o) for o in ops]
    i.dst=[];i.src=[];i.srcC=[];i.passes=0;i.lds=False;i.wide=False;i.dpp=False
    flat=lambda l:[x for y in l for x in y]
    if op.startswith('v_mfma'):
        i.kind='mfma'; i.dst=R[0]; i.src=R[1]+R[2]; i.srcC=R[3]
        i.passes=8 if '32x32' in op else 4
    elif op.startswith('v_'):
        i.kind='valu'
        i.dpp = ('_dpp' in op) or ('row_' in mods) or ('quad_perm' in mods)
        if op.startswith('v_cmp'):
            i.dst=R[0]; i.src=flat(R[1:])
        elif op.startswith('v_permlane') and 'swap' in op:
            i.dst=R[0]+R[1]; i.src=R[0]+R[1]
        elif '_co_' in op:
            i.dst=R[0]+R[1]; i.src=flat(R[2:])
        elif op.startswith(('v_fmac','v_dot2c','v_pk_fmac')):
            i.dst=R[0]; i.src=flat(R)
        elif op=='v_nop': pass
        else:
            i.dst=R[0]; i.src=flat(R[1:])
            if i.dpp: i.src=i.src+R[0]
        if op.startswith('v_cndmask') and len(ops)==3: i.src+=regs_of('vcc')
    elif op.startswith('ds_'):
        i.kind='ds'
        if op.startswith(('ds_read','ds_bpermute','ds_permute','ds_swizzle')):
            i.dst=R[0]; i.src=flat(R[1:])
        else: i.src=flat(R)
    elif op.startswith(('buffer_','global_')):
        i.kind='vmem'
        allm=' '+mods+' '
        if op in('buffer_wbl2','buffer_inv'): pass
        elif ' lds ' in allm or 'load_lds' in op:
            i.lds=True; i.src=flat(R)+regs_of('m0')
        elif 'load' in op:
            i.dst=R[0]; i.src=flat(R[1:])
        elif 'atomic' in op:
            i.src=flat(R)
            if ' sc0 ' in allm: i.dst=R[0]
        else:
            i.src=flat(R); i.wide=('x3' in op or 'x4' in op)
            i.srcC = R[0] if op.startswith('buffer') else R[1]
    elif op.startswith(('s_load','s_memtime','s_memrealtime','s_buffer_load')):
        i.kind='smem'; i.dst=R[0]; i.src=flat(R[1:])
    elif op.startswith('s_'):
        i.kind='salu'
        if op.startswith(('s_cmp','s_cbranch','s_branch','s_waitcnt','s_barrier','s_nop','s_sleep','s_setprio','s_endpgm','s_bitcmp')):
            i.src=flat(R)
        else:
            i.dst=R[0]; i.src=flat(R[1:])
            if 'saveexec' in op: i.dst=i.dst+regs_of('exec')
    else:
        raise ValueError(text)
    return i

class Asm:
    def __init__(self):
        self.out=[]
        self.vm=[]
        self.lg=[]
        self.hist=[]
        self.region=0; self.nreg=0; self.nid=0
        self.snap={}
        self.nnop=0; self.nlab=0
        self.smem_pending=False
        self.ic=0; self.lgage=0
    def raw(self,t): self.out.append(t)
    def comment(self,t): self.out.append('    ; '+t)
    def _age(self,n):
        for h in self.hist: h[0]+=n
        self.hist=[h for h in self.hist if h[0]<=24]
    def _put(self,text,n=1):
        self.out.append('    '+text); self._age(n)
    def nop(self,n):
        while n>0:
            k=min(n,16); self._put(f's_nop {k-1}',k); n-=k; self.nnop+=1
    def _count(self,q,idx):
        r=q[idx]['region']
        return sum(1 for e in q[idx+1:] if e['region']==0 or e['region']==r or e['region']==self.region)
    def _need(self,q,regs):
        idx=-1
        for k,e in enumerate(q):
            if e['regs'] & regs: idx=k
        return idx
    def _dowait(self,vi,li):
        parts=[]
        if vi>=0:
            n=min(self._count(self.vm,vi),63); parts.append(f'vmcnt({n})')
            self._retire('vm',vi)
        if li>=0:
            n=min(self._count(self.lg,li),15); parts.append(f'lgkmcnt({n})')
            self._retire('lg',li)
        if parts: self._put('s_waitcnt '+' '.join(parts))
    def _retire(self,qn,idx):
        q=getattr(self,qn)
        if self.region==0: q=q[idx+1:]
        else:
            nq=[]
            for k,e in enumerate(q):
                if k<=idx:
                    if e['region']==self.region: continue
                    e=dict(e); e.setdefault('saved',e['regs']); e['regs']=set(); e['done_in']=self.region
                nq.append(e)
            q=nq
        setattr(self,qn,q)
    def wait_tok(self,*toks):
        vi=-1;li=-1
        for t in toks:
            for k,e in enumerate(self.vm):
                if e['id']==t and e.get('done_in')!=self.region: vi=max(vi,k)
            for k,e in enumerate(self.lg):
                if e['id']==t and e.get('done_in')!=self.region: li=max(li,k)
        self._dowait(vi,li)
    def wait_vm0(self):
        self._put('s_waitcnt vmcnt(0)')
        if self.vm: self._retire('vm',len(self.vm)-1)
    def wait_lg0(self):
        self._put('s_waitcnt lgkmcnt(0)'); self.smem_pending=False
        if self.lg: self._retire('lg',len(self.lg)-1)
    def _hazard(self,c):
        need=0
        cs=set(c.src); cd=set(c.dst); cC=set(c.srcC) if c.kind=='mfma' else set()
        for age,p in self.hist:
            pd=set(p.dst); w=0
            if p.kind=='valu':
                vd={r for r in pd if r[0]!='s'}; sd={r for r in pd if r[0]=='s'}
                if c.kind=='mfma' and vd&(cs|cC): w=max(w,2)
                if c.kind=='valu':
                    if vd&cs:
                        if c.op.startswith('v_permlane') or c.dpp: w=max(w,2)
                        if c.op.startswith(('v_readlane','v_readfirstlane')): w=max(w,1)
                        if p.op.startswith(TRANS): w=max(w,1)
                    if sd&cs: w=max(w,4 if c.op.startswith(('v_readlane','v_writelane')) else 2)
                if p.op.startswith('v_dot') and (vd&(cs|cd|cC)):
                    same = c.op==p.op
                    if not (same and not (vd & set(c.src[:-1] if not c.op.startswith('v_dot2c') else c.src[1:]))): w=max(w,3)
                if c.kind=='vmem' and sd&cs: w=max(w,5)
                if c.kind=='salu' and sd&cs: w=max(w,1)
            elif p.kind=='mfma':
                L=12 if p.passes==8 else 8
                if c.kind=='mfma':
                    if pd&cs: w=max(w,L)
                    if pd&cC:
                        if not (list(p.dst)==list(c.srcC) and p.passes==c.passes): w=max(w,L-2)
                    elif pd&cd: w=max(w,L-2)
                elif c.kind in('valu','vmem','ds'):
                    if pd&(cs|cd): w=max(w,L)
                    if c.kind=='valu' and set(p.srcC)&cd: w=max(w,7 if p.passes==8 else 3)
            elif p.kind=='salu':
                if ('s',124) in pd and c.kind=='vmem' and c.lds: w=max(w,1)
            elif p.kind=='vmem':
                if p.wide and set(p.srcC)&cd: w=max(w,2)
            elif p.kind=='ds':
                pass
            if w-age>need: need=w-age
        return need
    def __call__(self,text):
        toks=None
        for line in text.split('\n'):
            line=line.strip()
            if line: toks=self.emit(line)
        return toks
    def emit(self,text):
        c=parse(text)
        if c.kind=='vmem' and c.dst==[('v',14)]: c.dst=[]
        touched=set(c.src)|set(c.dst)|set(c.srcC)
        vi=self._need(self.vm,touched); li=self._need(self.lg,touched)
        if li>=0 and self.lgage:
            while li+1<len(self.lg) and self.ic-self.lg[li+1]['ic']>=self.lgage: li+=1
        self._dowait(vi,li)
        self.ic+=1
        n=self._hazard(c)
        if n>0: self.nop(n)
        self.out.append('    '+text)
        self._age(1)
        self.hist.append([0,c])
        tok=None
        if c.kind=='vmem':
            self.nid+=1; tok=self.nid
            self.vm.append(dict(regs=set(c.dst),region=self.region,id=tok))
        elif c.kind=='ds':
            assert not self.smem_pending, 'ds op while smem pending'
            self.nid+=1; tok=self.nid
            self.lg.append(dict(regs=set(c.dst),region=self.region,id=tok,ic=self.ic))
        elif c.kind=='smem':
            self.smem_pending=True
        if c.op.startswith(('s_cbranch','s_branch')):
            lab=text.split()[1]
            self.snap.setdefault(lab,[]).append([[a,p] for a,p in self.hist])
        return tok
    def newlabel(self,base='L'):
        self.nlab+=1; return f'{base}_{self.nlab}'
    def label(self,name):
        self.out.append(name+':')
        for s in self.snap.get(name,[]):
            self.hist+= [[a,p] for a,p in s]
    def barrier(self):
        self._put('s_barrier')
    def begin_region(self):
        assert self.region==0
        self.nreg+=1; self.region=self.nreg
    def end_region(self):
        for qn in('vm','lg'):
            q=getattr(self,qn)
            for e in q:
                if e.get('done_in')==self.region:
                    e['regs']=e.pop('saved'); e.pop('done_in')
        self.region=0
    def text(self): return '\n'.join(self.out)+'\n'

class Stream:
    def __init__(self): self.items=[]
    def __call__(self,text,name=None):
        lines=[l.strip() for l in text.split('\n') if l.strip()]
        for k,l in enumerate(lines):
            self.items.append(('i',l,name if k==len(lines)-1 else None))
    def group(self,text,name=None):
        lines=[l.strip() for l in text.split('\n') if l.strip()]
        self.items.append(('g',lines,name))
    def call(self,fn): self.items.append(('c',fn,None))
    def __len__(self): return len(self.items)

def play(A,items,toks):
    for kind,x,name in items:
        if kind=='i': t=A.emit(x)
        elif kind=='g':
            for l in x: t=A.emit(l)
        else:
            t=x()
        if name: toks[name]=t

def merge(main,sides,start=0,end=None):
    end=len(main) if end is None else end
    n=end-start
    for side in sides:
        it=side.items; m=len(it)
        for k,x in enumerate(it):
            main[start+min(n-1,(k*n)//m)].append(x)
    return main

def _cls(line):
    op=line.split()[0]
    if op.startswith('ds_write'): return ('m',14)
    if op.startswith('ds_'): return ('m',8)
    if op.startswith(('buffer_','global_')): return ('m',13)
    if op.startswith('s_'): return ('s',4)
    if op.startswith(TRANS): return ('v',8)
    return ('v',4)
def item_info(it):
    kind,x,name=it
    if kind=='i': c,k=_cls(x); return c,k
    if kind=='g':
        cs=[_cls(l) for l in x]; k=sum(c[1] for c in cs)
        if any(c[0]=='m' for c in cs): return 'm',k
        if any(c[0]=='v' for c in cs): return 'v',k
        return 's',k
    return getattr(x,'cls','s'),getattr(x,'cost',8)
ORD={'m':0,'s':1,'v':2}
class Gaps:
    def __init__(self,mf,budget,reserve=0):
        self.mf=mf; self.g=[[] for _ in mf]; self.budget=budget; self.reserve=reserve
    def cost(self,k,extra=None):
        its=self.g[k]+([extra] if extra else [])
        c=4+sum(i[2] for i in its)
        cl=[i[1] for i in its]
        if 'v' in cl:
            if 'm' in cl and 's' not in cl: c-=4
            if 'm' not in cl and 's' not in cl: c+=4
        return c
    def fixed(self,k,items):
        for it in items:
            c,w=item_info(it); self.g[k].append((it,c,w,len(self.g[k])))
    def front(self,k,it):
        c,w=item_info(it); self.g[k].append((it,'f',w,0))
    def add(self,S,start,end,even=True):
        its=S.items; n=len(its); k=start; last=None
        for j,it in enumerate(its):
            c,w=item_info(it)
            tgt=start+(j*(end-start))//n if even else start
            kk=max(k,tgt)
            if kk==k and last is not None and ORD[c]<ORD[last]: kk+=1
            first=kk
            latest=end-1-0
            while kk<latest and self.cost(kk,(it,c,w,0))>self.budget-self.reserve: kk+=1
            if kk>=latest and self.cost(min(kk,latest),(it,c,w,0))>self.budget-self.reserve:
                cand=range(min(first,latest),min(first+3,latest)+1)
                kk=min(cand,key=lambda q:self.cost(q,(it,c,w,0)))
            elif kk-first>6 and (end-kk)<(n-j):
                cand=range(min(first,latest),min(first+3,latest)+1)
                kk=min(cand,key=lambda q:self.cost(q,(it,c,w,0)))
            kk=min(kk,latest)
            if kk==k and last is not None and ORD[c]<ORD[last]: c=last
            self.g[kk].append((it,c,w,len(self.g[kk])))
            k=kk; last=c
    def slots(self):
        out=[]; tot=0
        o=dict(ORD); o['f']=-1
        for k,m in enumerate(self.mf):
            its=sorted(self.g[k],key=lambda i:(o[i[1]],i[3]))
            out.append([('i',m,None)]+[i[0] for i in its]); tot+=max(self.budget,self.cost(k))
        self.est=tot
        return out
```

```python
import sys,struct,subprocess,re
from asmlib import Asm,Stream,play,merge,Gaps
NAME="adaLN_cond__sliding_local_dilated__glu_gated_glu__prompt"
TS = '--ts' in sys.argv
HOT= '--hot' in sys.argv
def knob(n,d):
    for a in sys.argv:
        if a.startswith('--'+n+'='): return type(d)(a.split('=')[1])
    return d
PLACE=dict(B5='misc,two,pre,wc0',B6='wc1',B7='wc2,tq0,tq1',ATT='',OST='',CA='q0',CS='',ZST='q1',DA='tq2,tq3,q2',DB='q3,th,te0,te1')
for k in PLACE: PLACE[k]=[x for x in knob(k,PLACE[k]).split(',') if x]
SL=[81920,106496,131072]; MODT=155648; CS=159744
RG=[0,49152,98304]; SCR=147456
MODP=0x10000; TSOFF=0x40000; CL0=0x200000; CLS=0x100000
XCC=0; FLAGS=0x100; STATS=0x1000; OO=0x10000; ZZ=0x10000; HH=0x50000; DUMMY=0xB0000
X,WQ,WO,WG,WU,WD,CC,WM,OUT,WS = [f's[{i}:{i+3}]' for i in range(28,68,4)]
sW,sX,sA,sRB,sL3,sA16,sCL,sTAG,sFAST = [f's{i}' for i in range(68,77)]
sM,sKH,sS0='s77','s78','s79'
sTB=[f's{i}' for i in range(80,84)]
sROT=[f's{i}' for i in range(84,88)]
t0,t1,t2,t3='s88','s89','s90','s91'
sMASK='s[92:93]'; sP='s[94:95]'; sCNT='s96'; sOFF='s97'; sAL='s98'; sTT='s99'
sG,sLD,sG2,sWJ,sFL,sOA,sHS,sWL3,sWA16,sTO='s4','s5','s6','s7','s8','s9','s10','s11','s12','s13'
vL='v1'; vL16='v2'; vL4='v3'; vTS='v15'
LOG2E=1.4426950408889634
def f2u(x): return '0x%08x'%struct.unpack('<I',struct.pack('<f',x))[0]
def V(a,n=1): return f'v{a}' if n==1 else f'v[{a}:{a+n-1}]'
def Ag(a,n=1): return f'a{a}' if n==1 else f'a[{a}:{a+n-1}]'

A=Asm(); T={}; TAIL=[]
nts=[0]
def ts(name):
    if not TS: return
    A.wait_lg0()
    A('s_memtime s[100:101]'); A.wait_lg0()
    A(f'v_writelane_b32 {vTS}, s100, {nts[0]}')
    print(f'ts{nts[0]}: {name}', file=sys.stderr)
    nts[0]+=1
def run(s): play(A,s.items,T)
def runslots(slots):
    for sl in slots: play(A,sl,T)
def cat(*ss):
    r=Stream()
    for s in ss: r.items+=s.items
    return r
def srd(name,ptr,size):
    b=int(name[2:name.index(':')])
    A(f's_mov_b32 s{b}, s{ptr}\ns_and_b32 s{b+1}, s{ptr+1}, 0xffff\ns_mov_b32 s{b+2}, {size}\ns_mov_b32 s{b+3}, 0x20000')
def fast_slow(fn):
    ls=A.newlabel('L_slow'); lj=A.newlabel('L_join')
    A(f's_cmp_eq_u32 {sFAST}, 0')
    A.raw(f'    s_cbranch_scc1 {ls}')
    n0=len(A.out)
    r=fn('@SC@')
    body=A.out[n0:]; del A.out[n0:]
    A.out+= [l.replace('@SC@','') for l in body]
    A.raw(f'{lj}:')
    TAIL.append(f'{ls}:'); TAIL.extend(l.replace('@SC@',' sc1') for l in body); TAIL.append(f'    s_branch {lj}')
    return r
def publish_flag(phase,tok):
    A(f'v_mov_b32 v7, {sTAG}')
    A.wait_tok(tok)
    A('s_mov_b64 exec, 1')
    fast_slow(lambda f: A(f'buffer_store_dword v7, off, {WS}, {sFL} offset:{FLAGS+phase*256}{f}'))
    A('s_mov_b64 exec, -1')
def poll_flags(phase):
    l=A.newlabel('L_poll'); d=A.newlabel('L_pd')
    A(f's_mov_b32 {sCNT}, 0')
    A.label(l)
    A(f'buffer_load_dword v7, {vL4}, {WS}, {sCL} offen offset:{FLAGS+phase*256} sc1')
    A(f's_add_u32 {sCNT}, {sCNT}, 1')
    A.wait_vm0()
    A(f'v_cmp_eq_u32 vcc, {sTAG}, v7')
    A(f's_and_b64 {sP}, vcc, {sMASK}')
    A(f's_cmp_eq_u64 {sP}, {sMASK}')
    A(f's_cbranch_scc1 {d}')
    A(f's_cmp_lt_u32 {sCNT}, 0x80000')
    A(f's_cbranch_scc1 {l}')
    A.label(d)
def dma(S,voff,srd_,goff,loff,name,imm=0):
    o=f' offset:{imm}' if imm else ''
    S(f's_add_u32 m0, {sLD}, {loff-imm}')
    so=sG
    if goff is not None: S(f's_add_u32 {sG2}, {sG}, {goff}'); so=sG2
    S(f'buffer_load_dwordx4 {voff}, {srd_}, {so} offen{o} lds',name)
def tlanes(S,n): S(f'v_min_u32 v5, {n-1}, {vL}\nv_lshlrev_b32 v5, 7, v5')
def touch(S,srd_,soff,voff='v5'): S(f'buffer_load_dword v14, {voff}, {srd_}, {soff} offen')
def aloads(n,reg):
    S=Stream()
    for i in range(n):
        S(f'buffer_load_dwordx4 {Ag(reg+4*i,4)}, {vL16}, {WS}, {sAL} offen offset:{(i%4)*1024} sc1')
        if i%4==3 and i<n-1: S(f's_add_u32 {sAL}, {sAL}, 4096')
    return S
def asplit(n,reg,k):
    S=aloads(n,reg); return split(S,k+k//4)
def call(fn,cls='s',cost=8):
    fn.cls=cls; fn.cost=cost; return ('c',fn,None)
def split(S,n):
    a=Stream(); b=Stream(); a.items=S.items[:n]; b.items=S.items[n:]; return a,b

A.raw(f'{NAME}_kernel:')
A('s_cmp_ge_u32 s2, 256')
A('s_cbranch_scc1 L_end')
A('s_load_dwordx16 s[4:19], s[0:1], 0')
A('s_load_dwordx8 s[20:27], s[0:1], 64')
if TS: A('s_memtime s[100:101]')
A(f'v_lshrrev_b32 v8, 6, v0\nv_and_b32 {vL}, 63, v0')
A(f'v_readfirstlane_b32 {sW}, v8')
A(f'v_lshlrev_b32 {vL16}, 4, {vL}\nv_lshlrev_b32 {vL4}, 2, {vL}')
A(f's_and_b32 {sX}, s2, 7\ns_lshr_b32 {sA}, s2, 3\ns_lshr_b32 {sRB}, {sA}, 3\ns_and_b32 {sL3}, {sA}, 7\ns_and_b32 {sA16}, {sA}, 15')
A(f's_lshl_b32 {t0}, {sX}, 1\ns_lshr_b32 {t1}, {sA}, 4\ns_add_u32 {t0}, {t0}, {t1}')
A(f's_lshl_b32 {sCL}, {t0}, 20\ns_add_u32 {sCL}, {sCL}, {CL0}')
A(f's_lshl_b32 {sS0}, {sX}, 8\ns_lshl_b32 {t1}, {sRB}, 6\ns_add_u32 {sS0}, {sS0}, {t1}')
A(f's_and_b32 {sM}, {sW}, 1\ns_lshr_b32 {sKH}, {sW}, 1')
A(f's_and_b32 {t0}, {sRB}, 1\ns_lshl_b32 {sTT}, {t0}, 1')
for i in range(4):
    A(f's_add_u32 {t0}, {sRB}, {i}\ns_and_b32 {sROT[i]}, {t0}, 3')
A(f'v_lshrrev_b32 v8, 3, {vL}\nv_and_b32 v9, 7, {vL}\nv_and_b32 v10, 2, v8\nv_xor_b32 v9, v9, v10\nv_lshlrev_b32 v9, 4, v9\nv_xor_b32 v10, 64, v9')
A(f'v_mul_u32_u24 v11, 6144, v8\nv_add_u32 v4, v11, v9\nv_add_u32 v5, v11, v10')
A(f'v_mul_u32_u24 v11, 3072, v8\nv_add_u32 v6, v11, v9\nv_add_u32 v7, v11, v10\nv_add_u32 v7, {8*3072}, v7')
A(f'v_lshlrev_b32 v12, 7, {vL}')
A(f'v_lshrrev_b32 v8, 4, {vL}\nv_and_b32 v9, 15, {vL}')
A(f'v_lshrrev_b32 v10, 2, v9\nv_lshl_add_u32 v10, v8, 3, v10\nv_lshlrev_b32 v10, 7, v10')
A(f'v_lshrrev_b32 v11, 3, v9\nv_and_b32 v13, 1, v8\nv_lshl_or_b32 v11, v13, 1, v11\nv_xor_b32 v11, {sW}, v11')
A(f'v_lshl_add_u32 v10, v11, 5, v10\nv_and_b32 v13, 3, v9\nv_lshl_add_u32 v13, v13, 3, v10')
A(f's_lshl_b32 {t0}, {sW}, 2\nv_add_u32 v8, {t0}, v8\nv_lshlrev_b32 v8, 10, v8\nv_lshl_add_u32 v11, v9, 4, v8')
A.wait_lg0()
if TS:
    A(f'v_writelane_b32 {vTS}, s100, 0'); nts[0]=1; print('ts0: entry',file=sys.stderr)
A(f's_load_dword {sTAG}, s[26:27], 0')
srd(WM,20,512*3072*2); srd(CC,18,1024); srd(X,4,2048*512*2)
def prod_cond(lo,hi,lab):
    A(f's_sub_u32 {t0}, {sA}, {lo}\ns_cmp_ge_u32 {t0}, {hi-lo}')
    A(f's_cbranch_scc1 {lab}')
def prod_loads(lo,hi):
    lab=A.newlabel('L_npl'); prod_cond(lo,hi,lab); A.begin_region()
    A(f's_and_b32 {t0}, {sA}, 3\ns_lshl_b32 {t1}, {t0}, 8')
    tc=A(f'buffer_load_dword a255, {vL4}, {CC}, {t1} offen')
    A(f's_lshl_b32 {t1}, {t0}, 7\ns_lshl_b32 {t2}, {sW}, 5\ns_add_u32 {t1}, {t1}, {t2}\ns_mul_i32 {t1}, {t1}, 6144')
    A(f's_lshr_b32 {t2}, {sA}, 2\ns_lshl_b32 {t2}, {t2}, 3\ns_add_u32 {t2}, {t2}, {sX}\ns_lshl_b32 {t2}, {t2}, 7')
    A(f's_add_u32 {t1}, {t1}, {t2}\ns_lshl_b32 {t3}, {sW}, 12')
    for i in range(4):
        A(f's_add_u32 m0, {t3}, {i*1024}\ns_add_u32 {t2}, {t1}, {i*8*6144}')
        tw=A(f'buffer_load_dwordx4 {"v4" if i%2==0 else "v5"}, {WM}, {t2} offen lds')
    A.end_region(); A.label(lab)
    return tc,tw
def prod_compute(lo,hi,toks,R):
    tc,tw=toks
    lab=A.newlabel('L_npc'); prod_cond(lo,hi,lab); A.begin_region()
    a,b,c,d=R,R+1,R+2,R+3
    A(f'v_accvgpr_read_b32 v{b}, a255')
    A(f'v_lshlrev_b32 v{a}, 16, v{b}\nv_and_b32 v{b}, 0xffff0000, v{b}')
    A(f'v_mul_f32 v{c}, {f2u(-LOG2E)}, v{a}\nv_mul_f32 v{d}, {f2u(-LOG2E)}, v{b}')
    for r in (c,d): A(f'v_exp_f32 v{r}, v{r}')
    for r in (c,d): A(f'v_add_f32 v{r}, 1.0, v{r}')
    for r in (c,d): A(f'v_rcp_f32 v{r}, v{r}')
    A(f'v_mul_f32 v{a}, v{a}, v{c}\nv_mul_f32 v{b}, v{b}, v{d}')
    A(f'v_cvt_pk_bf16_f32 v{a}, v{a}, v{b}')
    A(f's_lshl_b32 {t0}, {sW}, 8\ns_add_u32 {t0}, {t0}, {CS}')
    A(f'v_add_u32 v{b}, {t0}, {vL4}')
    tk=A(f'ds_write_b32 v{b}, v{a}')
    A(f'v_and_b32 v{c}, 48, {vL}\nv_add_u32 v{a}, {t0}, v{c}')
    A.wait_tok(tk)
    for k in range(4): A(f'ds_read_b128 {V(R+8+4*k,4)}, v{a} offset:{k*64}')
    A(f's_and_b32 {t0}, {sA}, 3\ns_mul_i32 {t0}, {t0}, 12288')
    A(f's_lshr_b32 {t2}, {sA}, 2\ns_lshl_b32 {t2}, {t2}, 3\ns_add_u32 {t2}, {t2}, {sX}\ns_lshl_b32 {t2}, {t2}, 8')
    A(f's_add_u32 {t0}, {t0}, {t2}\ns_lshl_b32 {t2}, {sW}, 6\ns_add_u32 {t0}, {t0}, {t2}\ns_add_u32 {t0}, {t0}, {MODP}')
    A(f'v_mov_b32 v{b}, 0xffffff00')
    A.wait_tok(tw)
    A.barrier()
    for k in range(4):
        for rho in range(2):
            A(f'ds_read_b64_tr_b16 {V(R+24+4*k+2*rho,2)}, v13 offset:{k*4096+rho*512}')
    for k in range(4):
        A(f'v_mfma_f32_16x16x32_bf16 {V(R+4,4)}, {V(R+24+4*k,4)}, {V(R+8+4*k,4)}, {"0" if k==0 else V(R+4,4)}')
    for r in range(4): A(f'v_and_or_b32 v{R+4+r}, v{R+4+r}, v{b}, {sTB[r]}')
    A('s_mov_b32 exec_lo, 0x00010001\ns_mov_b32 exec_hi, 0x00010001')
    A(f'buffer_store_dwordx4 {V(R+4,4)}, v{c}, {WS}, {t0} offen sc1')
    A('s_mov_b64 exec, -1')
    A.end_region(); A.label(lab)
ptk=prod_loads(0,8)
A(f's_mul_i32 {t0}, {sL3}, 80\ns_mul_i32 {t1}, {sW}, 20\ns_add_u32 {t0}, {t0}, {t1}\ns_lshl_b32 {t0}, {t0}, 7')
A(f's_add_i32 {t1}, {sS0}, -16\ns_lshl_b32 {t1}, {t1}, 10\ns_add_i32 {t0}, {t0}, {t1}\ns_max_i32 {t0}, {t0}, 0')
A('s_mov_b64 exec, 0xfffff')
A(f'buffer_load_dword v14, v12, {X}, {t0} offen')
A(f's_getpc_b64 {sP}')
A.raw('L_pcref:')
A(f's_lshl_b32 {t0}, {sA}, 2\ns_add_u32 {t0}, {t0}, {sW}\ns_lshl_b32 {t0}, {t0}, 9')
A(f'v_add_u32 v8, {t0}, v12\nv_min_u32 v8, CODE_BYTES, v8')
A('s_mov_b64 exec, 0xf')
A(f'global_load_dword v14, v8, {sP}')
srd(WQ,6,512*1536*2); srd(WS,26,0x2000000)
srd(WO,8,512*512*2); srd(WG,12,512*1376*2); srd(WU,14,512*1376*2); srd(WD,16,1376*512*2); srd(OUT,22,2048*512*2)
if knob('tlb',1):
    A('s_mov_b64 exec, 1')
    A(f's_cmp_lg_u32 {sW}, 3'); A('s_cbranch_scc1 L_notlb'); A.begin_region()
    for b in (WQ,WO,WG,WU,WD): A(f'buffer_load_dword v14, off, {b}, 0')
    A(f'buffer_load_dword v14, off, {WS}, {sCL} offset:{FLAGS} sc1')
    A.end_region(); A.label('L_notlb')
A('s_mov_b64 exec, -1')
def xload(g):
    A(f's_add_i32 {t0}, {sS0}, {16*g-16}')
    if g==0: A(f's_max_i32 {t0}, {t0}, 0')
    A(f's_lshl_b32 {t0}, {t0}, 10')
    for a in range(4):
        A(f's_lshl_b32 {t1}, {sROT[a]}, 8\ns_add_u32 {t1}, {t1}, {t0}')
        A(f'buffer_load_dwordx4 {V(176+(g*4+a)*4,4)}, v11, {X}, {t1} offen')
NX0=knob('nx0',1)
for g in range(NX0): xload(g)
A.wait_lg0()
A(f's_mul_i32 {sTAG}, {sTAG}, 0x9E3779B1\ns_add_u32 {sTAG}, {sTAG}, 0x7F4A7C15')
for i in range(4):
    A(f's_lshr_b32 {sTB[i]}, {sTAG}, {8*i}\ns_and_b32 {sTB[i]}, {sTB[i]}, 0xff')
A(f's_lshl_b32 {sWJ}, {sA}, 2\ns_add_u32 {sWJ}, {sWJ}, {sW}')
if HOT: A(f's_lshl_b32 {sWL3}, {sL3}, 7\ns_mov_b32 {sWA16}, 0\ns_mov_b32 {sWJ}, 0')
else: A(f's_lshl_b32 {sWL3}, {sL3}, 7\ns_mul_i32 {sWA16}, {sA16}, 192')
A(f's_lshl_b32 {sFL}, {sA16}, 2\ns_add_u32 {sFL}, {sFL}, {sW}\ns_lshl_b32 {sFL}, {sFL}, 2\ns_add_u32 {sFL}, {sFL}, {sCL}')
ts('first loads issued')
A(f's_getreg_b32 {sFAST}, hwreg(HW_REG_XCC_ID, 0, 4)')
A(f's_cmp_lg_u32 {sW}, 0')
A('s_cbranch_scc1 L_noxcc')
A.begin_region()
A(f'v_mov_b32 v8, {sFAST}\nv_mov_b32 v9, {sTAG}')
A(f's_lshl_b32 {t0}, {sA16}, 3\ns_add_u32 {t0}, {t0}, {sCL}')
A('s_mov_b64 exec, 1')
A(f'buffer_store_dwordx2 v[8:9], off, {WS}, {t0} offset:{XCC} sc1')
A('s_mov_b64 exec, -1')
A.end_region()
A.label('L_noxcc')
prod_compute(0,8,ptk,20)
ts('mod published')
for g in range(NX0,5): xload(g)
def wb_dma(st):
    S=Stream()
    if st==0:
        S(f's_mul_i32 {sG}, {sW}, {16*3072}\ns_add_u32 {sG}, {sG}, {sWL3}\ns_lshl_b32 {sLD}, {sW}, 11')
        for q in range(4): S(f's_mul_i32 s{17+q}, {sROT[q]}, {128*3072}\ns_add_u32 s{17+q}, s{17+q}, {sG}')
    S(f's_add_u32 {sG}, s{17+(st>>1)}, {(st&1)*64*3072}')
    for sec in range(3):
        for i in range(2):
            dma(S,"v6" if i==0 else "v7",WQ,None,SL[st%3]+sec*8192+i*1024,f'wb{st}',imm=sec*1024)
    return S
def wb_read(st):
    S=Stream()
    reg,off=('v12',SL[st%3]-SL[0]) if st%3<2 else ('v13',0)
    for cc in range(2):
        for sec in (1,2,0):
            for rho in range(2):
                S(f'ds_read_b64_tr_b16 {Ag((st*2+cc)*12+sec*4+2*rho,2)}, {reg} offset:{off+sec*8192+cc*4096+rho*512}',f'wr{st}')
    return S
run(wb_dma(0))
if knob('w1early',0): run(wb_dma(1))
ptk=prod_loads(8,24)
ts('x + W0 issued')
NR=lambda a,g: 16+a*40+g*8
def ln1(g):
    raw=176+g*16
    A('s_mov_b32 s100, 0x3f803f80')
    A(f'v_dot2_f32_bf16 v8, v{raw}, s100, 0')
    A(f'v_dot2_f32_bf16 v9, v{raw}, v{raw}, 0')
    for j in range(1,16):
        A(f'v_dot2_f32_bf16 v8, v{raw+j}, s100, v8')
        A(f'v_dot2_f32_bf16 v9, v{raw+j}, v{raw+j}, v9')
    nn=lambda j: NR(j>>2,g)+2*(j&3)
    up=lambda j: A(f'v_lshlrev_b32 v{nn(j)}, 16, v{raw+j}\nv_and_b32 v{nn(j)+1}, 0xffff0000, v{raw+j}')
    up(0); k=1
    for sh in (8,4,2,1):
        A(f'v_add_f32_dpp v8, v8, v8 row_ror:{sh} row_mask:0xf bank_mask:0xf')
        A(f'v_add_f32_dpp v9, v9, v9 row_ror:{sh} row_mask:0xf bank_mask:0xf')
        up(k); k+=1
    A(f'v_mul_f32 v8, {f2u(1/512)}, v8\nv_mul_f32 v9, {f2u(1/512)}, v9')
    A(f'v_fma_f32 v9, -v8, v8, v9')
    A(f'v_max_f32 v9, 0, v9\nv_add_f32 v9, {f2u(1e-5)}, v9\nv_rsq_f32 v10, v9')
    for j in range(k,16): up(j)
    A(f'v_mul_f32_e64 v12, -v8, v10')
    for j in range(16):
        A(f'v_pk_fma_f32 {V(nn(j),2)}, {V(nn(j),2)}, v[10:11], v[12:13] op_sel_hi:[1,0,0]')
NL0=knob('nl0',3)
for g in range(NL0): ln1(g)
def modloads(S,voff,reg):
    for kq in range(4):
        S(f's_mov_b32 {sTO}, {MODP+kq*12288}\nbuffer_load_dwordx4 {V(reg+4*kq,4)}, {voff}, {WS}, {sTO} offen sc1')
def modfin(voff,reg,tmp,pk=True,addr=''):
    S=Stream(); l=A.newlabel('L_mchk'); r=A.newlabel('L_mretry')
    S.group(f's_mov_b32 {sCNT}, 0')
    def chk():
        A.raw(f'{l}:')
        A(f's_mov_b32 s100, 0x0c0c0400\ns_mov_b32 s101, 0x04000c0c\ns_mov_b64 {sP}, -1')
        for kq in range(4):
            b=reg+4*kq
            A(f'v_perm_b32 v{tmp}, v{b+1}, v{b}, s100\nv_perm_b32 v{tmp+1}, v{b+3}, v{b+2}, s101\nv_or_b32 v{tmp}, v{tmp}, v{tmp+1}')
            A(f'v_cmp_eq_u32 vcc, {sTAG}, v{tmp}')
            A(f's_and_b64 {sP}, {sP}, vcc')
        A(f's_cmp_eq_u64 {sP}, -1')
        A.raw(f'    s_cbranch_scc0 {r}')
        A.raw(f'{l}_ok:')
        TAIL.append(f'{r}:')
        for ln in addr.split('\n'):
            if ln: TAIL.append('    '+ln)
        for kq in range(4):
            TAIL.append(f'    s_mov_b32 {sTO}, {MODP+kq*12288}\n    buffer_load_dwordx4 {V(reg+4*kq,4)}, {voff}, {WS}, {sTO} offen sc1')
        TAIL.append(f'    s_add_u32 {sCNT}, {sCNT}, 1\n    s_waitcnt vmcnt(0)\n    s_cmp_lt_u32 {sCNT}, 0x80000\n    s_cbranch_scc1 {l}\n    s_branch {l}_ok')
    S.call(chk)
    for r_ in range(16): S(f'v_and_b32 v{reg+r_}, 0xffffff00, v{reg+r_}')
    if pk:
        for r_ in range(0,4,2): S(f'v_pk_add_f32 {V(reg+r_,2)}, {V(reg+r_,2)}, {V(reg+4+r_,2)}\nv_pk_add_f32 {V(reg+8+r_,2)}, {V(reg+8+r_,2)}, {V(reg+12+r_,2)}')
        for r_ in range(0,4,2): S(f'v_pk_add_f32 {V(reg+r_,2)}, {V(reg+r_,2)}, {V(reg+8+r_,2)}')
    else:
        for r_ in range(4): S(f'v_add_f32 v{reg+r_}, v{reg+r_}, v{reg+4+r_}\nv_add_f32 v{reg+8+r_}, v{reg+8+r_}, v{reg+12+r_}')
        for r_ in range(4): S(f'v_add_f32 v{reg+r_}, v{reg+r_}, v{reg+8+r_}')
    rnd(S,reg)
    return S
def rnd(S,reg):
    S(f'v_cvt_pk_bf16_f32 v{reg+4}, v{reg}, v{reg+1}\nv_cvt_pk_bf16_f32 v{reg+5}, v{reg+2}, v{reg+3}')
    S(f'v_lshlrev_b32 v{reg}, 16, v{reg+4}\nv_and_b32 v{reg+1}, 0xffff0000, v{reg+4}\nv_lshlrev_b32 v{reg+2}, 16, v{reg+5}\nv_and_b32 v{reg+3}, 0xffff0000, v{reg+5}')
A('v_lshlrev_b32 v11, 4, v0')
S=Stream(); modloads(S,'v11',176); run(S)
if not knob('w1early',0): run(wb_dma(1))
ts('mod poll issued')
for g in range(NL0,5): ln1(g)
ts('LN1 done')
prod_compute(8,24,ptk,192)
A(f'v_lshrrev_b32 v8, 4, {vL}\nv_and_b32 v9, 15, {vL}')
A(f'v_lshrrev_b32 v10, 1, v8\ns_lshl_b32 {t0}, {sW}, 1\nv_add_u32 v10, {t0}, v10\nv_and_b32 v12, 7, v9\nv_xor_b32 v10, v10, v12')
A(f'v_lshlrev_b32 v10, 4, v10\nv_lshl_add_u32 v10, v9, 8, v10\nv_and_b32 v12, 1, v8')
A(f'v_lshl_add_u32 v248, v12, 7, v10\nv_lshl_add_u32 v249, v12, 14, v10')
A(f'v_lshlrev_b32 v250, 5, v9\nv_add_u32 v250, {MODT}, v250')
A(f'v_xor_b32 v9, v9, v8\nv_lshlrev_b32 v9, 4, v9\nv_lshl_add_u32 v252, v8, 8, v9')
A(f'v_add_u32 v12, {SL[0]}, v13\nv_add_u32 v13, {SL[2]}, v13')
for a in range(4): A(f's_lshl_b32 {t0}, {sROT[a]}, 9\nv_add_u32 v{244+a}, {t0}, v250')
ts('late prod done')
run(modfin('v11',176,8))
ts('mod arrived')
A(f's_cmp_ge_u32 {sW}, 2\ns_cselect_b32 {t0}, 1.0, 0')
for r in range(4): A(f'v_add_f32 v{176+r}, {t0}, v{176+r}')
S=Stream(); rnd(S,176); run(S)
A(f'v_add_u32 v11, {MODT}, v11')
A('ds_write_b128 v11, v[176:179]')
run(wb_dma(2))
A(f'v_mov_b32 v8, v252\nv_xor_b32 v9, 64, v252\nv_add_u32 v10, 65536, v252\nv_add_u32 v11, 65536, v9')
A.wait_tok(T['wb0']); A.wait_lg0(); A.barrier()
def sbread(a):
    S=Stream(); r=176+16*(a&1)
    for hh in range(2):
        S(f'ds_read_b128 {V(r+4*hh,4)}, v{244+a} offset:{16*hh}')
        S(f'ds_read_b128 {V(r+8+4*hh,4)}, v{244+a} offset:{2048+16*hh}')
    return S
def masks():
    S=Stream(); NEG=f2u(-1e30)
    S(f'v_lshrrev_b32 v224, 4, {vL}\nv_lshlrev_b32 v224, 2, v224\nv_and_b32 v225, 15, {vL}\nv_mov_b32 v226, {NEG}')
    S.group(f's_cmp_eq_u32 {sS0}, 0\ns_cselect_b32 {t3}, 64, 0')
    for r in range(4):
        S(f'v_add_u32 v227, {r}, v224\nv_sub_u32 v228, v225, v227')
        S(f'v_cmp_gt_u32 vcc, 8, v228\nv_add_u32 v228, 9, v225\nv_cndmask_b32_e64 v{208+r}, v226, 0, vcc')
        S(f'v_cmp_ge_u32 vcc, v227, v228\nv_add_u32 v228, {t3}, v228\nv_cndmask_b32_e64 v{212+r}, v226, 0, vcc')
        S(f'v_cmp_ge_u32 vcc, v227, v228\nv_add_u32 v228, -8, v228\nv_cndmask_b32_e64 v{220+r}, v226, 0, vcc')
        S(f'v_cmp_ge_u32 vcc, v227, v228\nv_cndmask_b32_e64 v{216+r}, v226, 0, vcc')
        S(f'v_cmp_gt_u32 vcc, 8, v227\nv_cndmask_b32_e64 v{216+r}, v226, v{216+r}, vcc')
    return S
def vecaddr(d,u):
    return (f'v_bfe_u32 v{u}, {vL}, 3, 2\nv_and_b32 v{d}, 7, {vL}\nv_lshlrev_b32 v{d}, 4, v{d}\nv_lshl_add_u32 v{d}, v{u}, 11, v{d}\n'
            f's_lshl_b32 {t0}, {sL3}, 8\ns_lshl_b32 {t1}, {sKH}, 7\ns_add_u32 {t0}, {t0}, {t1}\ns_add_u32 {t0}, {t0}, 4096\nv_add_u32 v{d}, {t0}, v{d}')
def voffs():
    S=Stream()
    S(f'v_lshrrev_b32 v229, 3, {vL}\nv_and_b32 v230, 7, {vL}\nv_and_b32 v231, 2, v229\nv_lshlrev_b32 v231, 1, v231\nv_xor_b32 v231, v230, v231')
    S(f'v_lshlrev_b32 v231, 4, v231\nv_lshl_add_u32 v4, v229, 10, v231')
    S(vecaddr(232,229))
    S(f'v_and_b32 v233, 15, {vL}\nv_bfe_u32 v230, {vL}, 4, 1\nv_lshl_add_u32 v229, v233, 1, v230\nv_lshlrev_b32 v233, 3, v233')
    S(f'v_lshlrev_b32 v229, 10, v229\nv_lshrrev_b32 v230, 5, {vL}\nv_lshl_add_u32 v234, v230, 3, v229')
    S(f's_lshl_b32 {t0}, {sM}, 5\ns_add_u32 {t0}, {t0}, {sS0}\ns_lshl_b32 {t0}, {t0}, 10\ns_lshl_b32 {t1}, {sL3}, 7')
    S(f's_add_u32 {t0}, {t0}, {t1}\ns_lshl_b32 {t1}, {sKH}, 6\ns_add_u32 {sOFF}, {t0}, {t1}')
    S(f's_lshl_b32 {sOA}, {sTT}, 5\ns_lshl_b32 {t1}, {sL3}, 2\ns_add_u32 {sOA}, {sOA}, {t1}\ns_add_u32 {sOA}, {sOA}, {sW}')
    S(f's_lshl_b32 {sOA}, {sOA}, 10\ns_add_u32 {sOA}, {sOA}, {OO}')
    S(f's_add_u32 {t0}, {sTT}, {sM}\ns_lshl_b32 {t0}, {t0}, 3\ns_add_u32 {t0}, {t0}, {sL3}\ns_lshl_b32 {t0}, {t0}, 1\ns_add_u32 {t0}, {t0}, {sKH}\ns_lshl_b32 {t0}, {t0}, 9\ns_add_u32 {t0}, {t0}, {STATS}')
    S(f'v_and_b32 v229, 7, {vL}\nv_lshlrev_b32 v229, 7, v229\nv_bfe_u32 v230, {vL}, 3, 1\nv_lshl_add_u32 v235, v230, 15, v229\nv_add_u32 v235, {sOA}, v235')
    S(f'v_and_b32 v230, 0x1ff, v229\nv_add_u32 v230, {t0}, v230\nv_cmp_gt_u32 vcc, 16, {vL}\nv_add_u32 v229, {FLAGS}, v229\nv_cndmask_b32 v235, v230, v235, vcc')
    S(f'v_cmp_gt_u32 vcc, 32, {vL}\ns_add_u32 {sOA}, {sOA}, {sCL}\nv_cndmask_b32 v235, v229, v235, vcc')
    S(f's_mul_i32 {sHS}, {sW}, 86\ns_mul_i32 {t1}, {sA16}, 6\ns_add_u32 {sHS}, {sHS}, {t1}')
    S(f's_lshl_b32 {sHS}, {sHS}, 10\ns_add_u32 {sHS}, {sHS}, {sCL}\ns_add_u32 {sHS}, {sHS}, {HH}')
    S(f'v_lshrrev_b32 v229, 2, {vL}\nv_mul_u32_u24 v229, 2752, v229\nv_and_b32 v230, 3, {vL}\nv_lshlrev_b32 v230, 4, v230\nv_add_u32 v253, v229, v230\nv_xor_b32 v230, 32, v230\nv_add_u32 v254, v229, v230')
    return S
run(sbread(0)); run(wb_read(0)); run(sbread(1))
side=cat(masks(),voffs()).items; ns=len(side); u=0
for a in range(4):
    r=176+16*(a&1)
    for g in range(5):
        n=NR(a,g)
        for j in range(4): A(f'v_pk_fma_f32 {V(n+2*j,2)}, {V(n+2*j,2)}, {V(r+8+2*j,2)}, {V(r+2*j,2)}')
        for j in range(4): A(f'v_cvt_pk_bf16_f32 v{n+j}, v{n+2*j}, v{n+2*j+1}')
        if g==0: A(f'ds_write_b128 v248, {V(n,4)} offset:{a*4096}')
        else: A(f'ds_write_b128 v249, {V(n,4)} offset:{(1+2*((g-1)>>1))*16384+a*4096+((g-1)&1)*128}')
        if g==4 and a<2: run(sbread(a+2))
        u+=1; k0=ns*(u-1)//20; k1=ns*u//20
        play(A,side[k0:k1],T)
A.wait_lg0(); A.barrier()
ts('H written')
accQ=lambda t:56+(t-1)*4
accK=lambda t:72+t*4
accV=lambda t:92+t*4
def breads(sg):
    S=Stream(); buf=16+(sg&1)*20
    for t in range(5):
        if t<4: S(f'ds_read_b128 {V(buf+4*t,4)}, {"v8" if sg%2==0 else "v9"} offset:{t*16384+sg*1024}')
        else:   S(f'ds_read_b128 {V(buf+4*t,4)}, {"v10" if sg%2==0 else "v11"} offset:{sg*1024}')
    return S
WCP=[(0,6),(6,11),(11,16)]
def half_dma(srd_,hrows,i0,i1,lb0,lb1,name):
    S=Stream()
    S(f's_mul_i32 {sG}, {sKH}, {hrows*1024}\ns_lshl_b32 {sLD}, {sM}, 13\ns_add_u32 {sG}, {sG}, {sLD}\ns_add_u32 {sG}, {sG}, {sWL3}')
    S(f's_mul_i32 {sLD}, {sKH}, {(lb1-lb0)&0xffffffff}\ns_lshl_b32 {sG2}, {sM}, 10\ns_add_u32 {sLD}, {sLD}, {sG2}')
    for i in range(i0,i1): dma(S,'v4',srd_,i*16*1024,lb0+(i-i0)*2048,name)
    return S
def misc_loads():
    S=Stream()
    S(f'buffer_load_dwordx2 v[236:237], v233, {WS}, {sCL} offen offset:{XCC} sc1')
    for q in range(4): S(f'buffer_load_dwordx2 {Ag(224+2*q,2)}, v234, {X}, {sOFF} offen offset:{q*16}')
    modloads(S,'v232',112)
    return S
def item(n):
    S=Stream()
    if n=='two': tlanes(S,32); S(f's_lshl_b32 {sTO}, {sWJ}, 12'); touch(S,WO,sTO)
    elif n=='pre': touch(S,WS,sCL,'v235')
    elif n=='misc': return misc_loads()
    elif n[:2]=='wc':
        j=int(n[2]); return half_dma(WO,256,WCP[j][0],WCP[j][1],SL[(8+j)%3],SL[(8+j)%3]+12288,n)
    elif n[:2]=='tq':
        q=int(n[2]); tlanes(S,22); S(f's_add_u32 {sTO}, {sWJ}, {128*q}\ns_mul_i32 {sTO}, {sTO}, 2752')
        touch(S,WG,sTO); touch(S,WU,sTO)
    elif n[:2]=='te':
        h=int(n[2]); tlanes(S,43); S(f's_mul_i32 {sTO}, {sWJ}, {43*128}\ns_add_u32 {sTO}, {sTO}, {h*688*1024}'); touch(S,WD,sTO)
    elif n=='th': tlanes(S,48); touch(S,WS,sHS)
    elif n[0]=='q':
        q=int(n[1])
        S(f's_mul_i32 {sG}, {sW}, {32*2752}\ns_add_u32 {sG}, {sG}, {sWA16}\ns_lshl_b32 {sLD}, {sW}, 11\ns_add_u32 {sG}, {sG}, {q*128*2752}')
        for i in range(2):
            if i: S(f's_add_u32 {sG}, {sG}, {16*2752}')
            for mt in range(2):
                for p in range(3):
                    dma(S,'v6' if mt==0 else 'v13',WG if mt==0 else WU,None,RG[q%3]+p*16384+mt*8192+i*1024,f'wd{q}',imm=p*64)
    else: raise ValueError(n)
    return S
def place(p): return cat(*[item(n) for n in PLACE[p]])
run(breads(0))
mf=[]
for sg in range(16):
    buf=16+(sg&1)*20
    for t in range(5):
        h=V(buf+4*t,4); c=lambda r: '0' if sg==0 else V(r,4)
        mf.append(f'v_mfma_f32_16x16x32_bf16 {V(accK(t),4)}, {Ag(sg*12+4,4)}, {h}, {c(accK(t))}')
        mf.append(f'v_mfma_f32_16x16x32_bf16 {V(accV(t),4)}, {h}, {Ag(sg*12+8,4)}, {c(accV(t))}')
        if t>0: mf.append(f'v_mfma_f32_16x16x32_bf16 {V(accQ(t),4)}, {Ag(sg*12,4)}, {h}, {c(accQ(t))}')
G=Gaps(mf,17)
BP=3
PA=[0,2,3,7,10,14,17,21,26,27]; PT=[4,5,8,9,12,13,15,18,19,22,23,24]
for st in range(8):
    b=st*28
    def bar(st=st):
        w=[T[f'wr{st}']]
        if st<7: w.append(T[f'wb{st+1}'])
        A.wait_tok(*w); A.barrier()
    G.front(b+BP,call(bar,'s',8))
    ar=breads(st*2+1).items+(breads(st*2+2).items if st<7 else [])
    for p,it in zip(PA,ar): G.fixed(b+p,[it])
    if st<7:
        for p,it in zip(PT,wb_read(st+1).items): G.fixed(b+p,[it])
    if TS and '--tsb' in sys.argv: G.fixed(b+27,[call(lambda st=st: ts(f'B stage {st}'))])
for st in range(8):
    b=st*28
    side=wb_dma(st+3) if st+3<8 else place(f'B{st}')
    if len(side): G.add(side,b+BP+1,min(b+28+BP,224),st>=5)
A.lgage=knob('lgage',14)
runslots(G.slots()); print('B est',G.est,file=sys.stderr)
A.lgage=0
A(f'v_mov_b32 v6, v253\nv_mov_b32 v13, v254')
A.barrier()
ts('GEMM B done')
S=Stream()
for t in range(5):
    for j in range(2): S(f'v_cvt_pk_bf16_f32 v{24+2*t+j}, v{accK(t)+2*j}, v{accK(t)+2*j+1}')
for t in range(1,5):
    for j in range(2): S(f'v_cvt_pk_bf16_f32 v{16+2*(t-1)+j}, v{accQ(t)+2*j}, v{accQ(t)+2*j+1}')
prevT={1:0,2:0,3:1,4:2}; pmask={1:216,2:220,3:212,4:212}
SB=lambda t:136+8*(t-1)
MX=lambda t:168+2*(t-1)
OB=lambda t:176+4*(t-1)
for t in range(1,5):
    s=SB(t); q=V(16+2*(t-1),2)
    S(f'v_mfma_f32_16x16x16_bf16 {V(s,4)}, {V(24+2*prevT[t],2)}, {q}, {V(pmask[t],4)}')
    S(f'v_mfma_f32_16x16x16_bf16 {V(s+4,4)}, {V(24+2*t,2)}, {q}, v[208:211]')
vpos={1:36,3:38,2:42,4:44}
for t in range(5):
    for d in ([34,40] if t==0 else [vpos[t]]):
        for j in range(2): S(f'v_cvt_pk_bf16_f32 v{d+j}, v{accV(t)+2*j}, v{accV(t)+2*j+1}')
SC=0.25*LOG2E
S(f's_mov_b32 s100, {f2u(SC)}')
for t in range(1,5):
    s=SB(t); m=MX(t)
    S(f'v_max3_f32 v{m}, v{s}, v{s+1}, v{s+2}\nv_max3_f32 v{m+1}, v{s+3}, v{s+4}, v{s+5}')
    S(f'v_max3_f32 v{m}, v{m}, v{s+6}, v{s+7}\nv_max_f32 v{m}, v{m}, v{m+1}')
for sw in ('v_permlane16_swap_b32','v_permlane32_swap_b32'):
    for t in range(1,5): S(f'v_mov_b32 v{MX(t)+1}, v{MX(t)}')
    for t in range(1,5): S(f'{sw} v{MX(t)}, v{MX(t)+1}')
    for t in range(1,5): S(f'v_max_f32 v{MX(t)}, v{MX(t)}, v{MX(t)+1}')
for t in range(1,5): S(f'v_mul_f32 v{MX(t)}, s100, v{MX(t)}')
for r in range(4): S(f'v_mov_b32 v{46+r}, 0x3f803f80')
vch={1:34,3:36,2:40,4:42}
def pv(u):
    s=SB(u)
    S(f'v_mfma_f32_16x16x32_bf16 {V(OB(u),4)}, {V(vch[u],4)}, {V(s,4)}, 0')
    S(f'v_mfma_f32_16x16x32_bf16 {V(s+4,4)}, v[46:49], {V(s,4)}, 0')
def fin(u):
    o=OB(u); d=16+2*(u-1); sm=SB(u)+4
    S(f'v_rcp_f32 v{sm}, v{sm}')
    S(f'v_pk_mul_f32 {V(o,2)}, {V(o,2)}, {V(sm,2)} op_sel_hi:[1,0]\nv_pk_mul_f32 {V(o+2,2)}, {V(o+2,2)}, {V(sm,2)} op_sel_hi:[1,0]')
    S(f'v_cvt_pk_bf16_f32 v{d}, v{o}, v{o+1}\nv_cvt_pk_bf16_f32 v{d+1}, v{o+2}, v{o+3}')
for t in range(1,5):
    s=SB(t); m=MX(t)
    for r in range(8): S(f'v_fma_f32 v{s+r}, v{s+r}, s100, -v{m}')
    if t>1: pv(t-1)
    for r in range(8): S(f'v_exp_f32 v{s+r}, v{s+r}')
    for j in range(4): S(f'v_cvt_pk_bf16_f32 v{s+j}, v{s+2*j}, v{s+2*j+1}')
    if t>1: fin(t-1)
pv(4)
S.group(f'v_cmp_eq_u32 vcc, {sTAG}, v237\ns_mov_b64 {sP}, vcc')
S.group(f'v_cmp_eq_u32 vcc, {sFAST}, v236\ns_and_b64 {sP}, {sP}, vcc\ns_cmp_eq_u64 {sP}, -1\ns_cselect_b32 {sFAST}, 1, 0')
if '--slow' in sys.argv: S(f's_mov_b32 {sFAST}, 0')
S(f'v_permlane16_swap_b32 v16, v18\nv_permlane16_swap_b32 v17, v19')
fin(4)
S(f'v_permlane16_swap_b32 v20, v22\nv_permlane16_swap_b32 v21, v23')
slots=[[x] for x in S.items]
merge(slots,[place('ATT')],0,len(slots)-20)
runslots(slots)
A(f's_add_u32 {t1}, {sOA}, 32768')
def st_o(f):
    A(f'buffer_store_dwordx4 v[16:19], {vL16}, {WS}, {sOA} offen{f}')
    return A(f'buffer_store_dwordx4 v[20:23], {vL16}, {WS}, {t1} offen{f}')
tk=fast_slow(st_o)
run(place('OST'))
ts('attn done')
def base128(dst,hshift):
    A(f'v_lshrrev_b32 v8, 5, {vL}\nv_and_b32 v9, 15, {vL}\nv_lshrrev_b32 v10, 2, v9\nv_lshl_add_u32 v10, v8, {hshift}, v10\nv_lshlrev_b32 v10, 7, v10')
    A(f'v_lshrrev_b32 v11, 3, v9\nv_xor_b32 v11, {sKH}, v11\nv_lshl_add_u32 v10, v11, 6, v10')
    A(f'v_bfe_u32 v11, {vL}, 4, 1\nv_lshl_add_u32 v10, v11, 5, v10\nv_and_b32 v9, 3, v9\nv_lshl_add_u32 v{dst}, v9, 3, v10')
base128(12,3)
A(f's_mul_i32 {t0}, {sKH}, 12288\ns_add_u32 {t0}, {t0}, {SL[0]}\nv_add_u32 v10, {t0}, v12\nv_xor_b32 v11, 64, v10')
A.wait_tok(T['wc0'],T['wc1'],T['wc2']); A.barrier()
S=Stream()
for j,(c0,c1) in enumerate(WCP):
    for i in range(c0,c1):
        for s in range(2):
            for rho in range(2):
                S(f'ds_read_b64_tr_b16 {V(128+(i*2+s)*4+2*rho,2)}, v{10+s} offset:{SL[(8+j)%3]-SL[0]+(i-c0)*2048+rho*512}')
a_,b_=split(S,knob('wcsplit',40)); run(a_)
publish_flag(0,tk)
run(b_)
ts('B published')
A(f's_and_b32 {t0}, {sRB}, 1\ns_lshl_b32 {t0}, {t0}, 5\ns_lshl_b32 {t1}, {sKH}, 4\ns_add_u32 {t0}, {t0}, {t1}\ns_mov_b64 {sP}, 0xffff\ns_lshl_b64 {sMASK}, {sP}, {t0}')
A(f's_add_u32 {t0}, {sTT}, {sM}\ns_lshl_b32 {t0}, {t0}, 5\ns_lshl_b32 {t1}, {sKH}, 4\ns_add_u32 {t0}, {t0}, {t1}\ns_lshl_b32 {t0}, {t0}, 10\ns_add_u32 {t0}, {t0}, {sCL}\ns_add_u32 {sAL}, {t0}, {OO}')
poll_flags(0)
ts('C poll done')
a_,b_=asplit(16,0,10); run(a_)
A.wait_lg0(); A.barrier()
G=Gaps([f'v_mfma_f32_32x32x16_bf16 {V(16+16*s,16)}, {V(128+(i*2+s)*4,4)}, {Ag(4*i,4)}, {"0" if i==0 else V(16+16*s,16)}' for i in range(16) for s in range(2)],33,4)
G.add(b_,0,12)
if PLACE['CA']: G.add(place('CA'),12,32)
S=modfin('v10',112,8,False,vecaddr(10,11))
S(f'v_bfe_u32 v8, {vL}, 3, 2\nv_cmp_eq_u32 vcc, 2, v8\nv_cndmask_b32_e64 v8, 0, 1.0, vcc')
for r in range(4): S(f'v_add_f32 v{112+r}, v8, v{112+r}')
rnd(S,112)
S(f's_lshl_b32 {t0}, {sW}, 12\ns_add_u32 {t0}, {t0}, {SCR}\nv_add_u32 v8, {t0}, {vL16}')
S(f'v_lshrrev_b32 v9, 5, {vL}\nv_lshlrev_b32 v9, 4, v9\nv_add_u32 v9, {t0}, v9')
S('ds_write_b128 v8, v[112:115]')
for q in range(4):
    S(f'ds_read_b128 {V(64+4*q,4)}, v9 offset:{q*32}')
    S(f'ds_read_b128 {V(96+4*q,4)}, v9 offset:{128+q*32}')
    S(f'ds_read_b128 {V(80+4*q,4)}, v9 offset:{256+q*32}')
    S(f'ds_read_b128 {Ag(240+4*q,4)}, v9 offset:{384+q*32}')
S('v_xor_b32 v9, 8192, v8')
for r in range(8): S(f'v_accvgpr_read_b32 v{120+r}, a{224+r}')
play(A,S.items[:2],T); S.items=S.items[2:]
G.add(S,0,31,False)
runslots(G.slots()); print('C est',G.est,file=sys.stderr)
def kreduce(other,recv):
    for q in range(4): A(f'ds_write_b128 v8, {V(other+4*q,4)} offset:{q*1024}')
    A.wait_lg0(); A.barrier()
    for q in range(4): A(f'ds_read_b128 {V(recv+4*q,4)}, v9 offset:{q*1024}')
for q in range(4):
    for j in range(2):
        A(f'v_lshlrev_b32 v{240+4*q+2*j}, 16, v{120+2*q+j}\nv_and_b32 v{241+4*q+2*j}, 0xffff0000, v{120+2*q+j}')
kreduce(32,48)
A(f's_add_u32 {t0}, {sTT}, {sM}\ns_lshl_b32 {t0}, {t0}, 13\ns_add_u32 {t0}, {t0}, {sCL}\ns_add_u32 {t0}, {t0}, {STATS}')
A(f's_lshl_b32 {t1}, {sL3}, 1\ns_add_u32 {t1}, {t1}, {sKH}\ns_lshl_b32 {t1}, {t1}, 9\ns_add_u32 {t1}, {t1}, {t0}')
A('s_mov_b32 s100, 0x3f803f80')
for r in range(0,16,2): A(f'v_pk_add_f32 {V(16+r,2)}, {V(16+r,2)}, {V(48+r,2)}')
for r in range(0,16,2): A(f'v_pk_fma_f32 {V(16+r,2)}, {V(16+r,2)}, {V(64+r,2)}, {V(240+r,2)}')
for j in range(8): A(f'v_cvt_pk_bf16_f32 v{32+j}, v{16+2*j}, v{17+2*j}')
for j in range(8):
    A(f'v_dot2_f32_bf16 v40, v{32+j}, s100, {"0" if j==0 else "v40"}')
    A(f'v_dot2_f32_bf16 v42, v{32+j}, v{32+j}, {"0" if j==0 else "v42"}')
A(f'v_and_b32 v8, 31, {vL}\nv_lshlrev_b32 v8, 4, v8\nv_lshrrev_b32 v9, 5, {vL}')
A('v_mov_b32 v41, v40\nv_mov_b32 v43, v42')
A('v_lshl_add_u32 v8, v9, 12, v8')
A('v_permlane32_swap_b32 v40, v41\nv_permlane32_swap_b32 v42, v43')
A('v_add_f32 v40, v40, v41\nv_add_f32 v42, v42, v43')
A(f'v_mov_b32 v41, {sTAG}\nv_mov_b32 v43, {sTAG}')
A('s_mov_b64 exec, 0xffffffff')
fast_slow(lambda f: A(f'buffer_store_dwordx4 v[40:43], {vL16}, {WS}, {t1} offen{f}'))
A('s_mov_b64 exec, -1')
ts('stats stored')
run(place('CS'))
for j in range(8): A(f'v_lshlrev_b32 v{240+2*j}, 16, v{32+j}\nv_and_b32 v{241+2*j}, 0xffff0000, v{32+j}')
A(f's_mov_b32 {sCNT}, 0')
A.label('L_st')
for i in range(8): A(f'buffer_load_dwordx4 {V(128+4*i,4)}, v8, {WS}, {t0} offen offset:{i*512} sc1')
A(f's_add_u32 {sCNT}, {sCNT}, 1')
for i in range(8):
    A(f'v_xor_b32 v{129+4*i}, {sTAG}, v{129+4*i}\nv_xor_b32 v{131+4*i}, {sTAG}, v{131+4*i}')
    if i==0: A('v_or_b32 v9, v129, v131')
    else: A(f'v_or3_b32 v9, v9, v{129+4*i}, v{131+4*i}')
A('v_cmp_ne_u32 vcc, 0, v9')
A(f's_cbranch_vccz L_std\ns_cmp_lt_u32 {sCNT}, 0x80000\ns_cbranch_scc1 L_st')
A.label('L_std')
ts('stats arrived')
for i in range(1,8): A(f'v_add_f32 v128, v128, v{128+4*i}\nv_add_f32 v130, v130, v{130+4*i}')
A('v_mov_b32 v129, v128\nv_mov_b32 v131, v130')
A(f's_add_u32 {t0}, {sTT}, {sM}\ns_lshl_b32 {t0}, {t0}, 5')
A('v_permlane32_swap_b32 v128, v129\nv_permlane32_swap_b32 v130, v131')
A('v_add_f32 v128, v128, v129\nv_add_f32 v130, v130, v131')
A(f'v_mul_f32 v128, {f2u(1/512)}, v128\nv_mul_f32 v130, {f2u(1/512)}, v130\nv_fma_f32 v130, -v128, v128, v130\nv_max_f32 v130, 0, v130')
A(f'v_add_f32 v130, {f2u(1e-5)}, v130\nv_rsq_f32 v130, v130')
A(f's_lshl_b32 {t1}, {sL3}, 2\ns_add_u32 {t0}, {t0}, {t1}\ns_lshl_b32 {t1}, {sKH}, 1')
A('v_mul_f32_e64 v128, -v128, v130')
A(f's_add_u32 {t0}, {t0}, {t1}\ns_lshl_b32 {t0}, {t0}, 10\ns_add_u32 {t0}, {t0}, {sCL}\ns_add_u32 {t0}, {t0}, {ZZ}')
for r in range(0,16,2): A(f'v_pk_fma_f32 {V(16+r,2)}, {V(240+r,2)}, v[130:131], v[128:129] op_sel_hi:[1,0,0]')
for r in range(0,16,2): A(f'v_pk_fma_f32 {V(16+r,2)}, {V(16+r,2)}, {V(80+r,2)}, {V(96+r,2)}')
for j in range(8): A(f'v_cvt_pk_bf16_f32 v{32+j}, v{16+2*j}, v{17+2*j}')
def st_z(f):
    A(f'buffer_store_dwordx4 v[32:35], {vL16}, {WS}, {t0} offen{f}')
    return A(f'buffer_store_dwordx4 v[36:39], {vL16}, {WS}, {t0} offen offset:1024{f}')
tk=fast_slow(st_z)
run(place('ZST'))
ts('C epilogue done')
A(f's_mov_b32 s100, 0x55555555\ns_mov_b32 s101, 0\ns_lshl_b32 {t0}, {sKH}, 5\ns_add_u32 {t0}, {t0}, {sM}\ns_lshl_b64 {sMASK}, s[100:101], {t0}')
A(f'v_lshrrev_b32 v8, 5, {vL}\nv_and_b32 v9, 15, {vL}\nv_lshrrev_b32 v10, 2, v9\nv_lshl_add_u32 v10, v8, 2, v10\nv_lshlrev_b32 v10, 6, v10')
A(f'v_bfe_u32 v11, {vL}, 4, 1\nv_mul_u32_u24 v11, 8224, v11\nv_add_u32 v10, v10, v11\nv_and_b32 v9, 3, v9\nv_lshl_add_u32 v152, v9, 3, v10')
A('v_xor_b32 v153, 32, v152')
for r in (1,2): A(f'v_add_u32 v{152+2*r}, {RG[r]}, v152\nv_add_u32 v{153+2*r}, {RG[r]}, v153')
A(f's_lshl_b32 {sAL}, {sW}, 15\ns_add_u32 {sAL}, {sAL}, {sCL}\ns_add_u32 {sAL}, {sAL}, {ZZ}')
for p in range(3):
    A(f's_mul_i32 {t1}, {sA16}, 3\ns_add_u32 {t1}, {t1}, {p}\ns_add_u32 {t0}, {sHS}, {p*2048}\ns_add_u32 {t2}, {sCL}, {DUMMY}\ns_cmp_lt_u32 {t1}, 43\ns_cselect_b32 s{14+p}, {t0}, {t2}')
publish_flag(1,tk)
ts('D poll start')
poll_flags(1)
ts('D poll done')
A(f's_lshl_b32 {t0}, {sW}, 8\ns_add_u32 {t0}, {t0}, s2\ns_cmp_lg_u32 {t0}, 120')
A('s_cbranch_scc1 L_noep')
A.begin_region()
A(f'v_lshrrev_b32 v8, 4, {vL}\nv_lshlrev_b32 v8, 20, v8\nv_and_b32 v9, 15, {vL}\nv_lshl_add_u32 v8, v9, 3, v8')
A(f's_mov_b32 {sCNT}, 0')
A.label('L_ep')
A(f's_mov_b64 {sP}, -1')
for i in range(4):
    A(f's_mov_b32 {t0}, {CL0+i*4*CLS+XCC+4}')
    A(f'buffer_load_dword v{16+i}, v8, {WS}, {t0} offen sc1')
for i in range(4):
    A(f'v_cmp_eq_u32 vcc, {sTAG}, v{16+i}\ns_and_b64 {sP}, {sP}, vcc')
A(f's_add_u32 {sCNT}, {sCNT}, 1')
A(f's_cmp_eq_u64 {sP}, -1\ns_cbranch_scc1 L_epd\ns_cmp_lt_u32 {sCNT}, 0x80000\ns_cbranch_scc1 L_ep')
A.label('L_epd')
A(f'v_mov_b32 v8, {sTAG}\ns_mov_b64 exec, 1')
A(f'buffer_store_dword v8, off, {WS}, 0 sc1')
A('s_mov_b64 exec, -1')
A.end_region()
A.label('L_noep')
a_,b_=asplit(32,0,8); run(a_)
A.barrier()
NB=8; PF=knob('pf',6)
seq=[(m,t) for m in range(16) for t in range(6)]+[(m,t) for t in range(6) for m in range(16,32)]
def d_rd(k):
    m,t=seq[k]; b=112+4*(k%NB); reg=152+2*((m>>3)%3)+(t&1)
    return [('i',f'ds_read_b64_tr_b16 {V(b+2*rho,2)}, v{reg} offset:{(t>>1)*16384+(m&7)*1024+rho*512}',f'dr{k}') for rho in range(2)]
we_dma=lambda i0,i1,l0,l1: half_dma(WD,688,i0,i1,l0,l1,'we')
def d_epi(t):
    S=Stream(); a=16+16*t; o=144+4*(t&1)
    for r in range(8): S(f'v_mul_f32 v{a+r}, {f2u(-LOG2E)}, v{a+r}')
    for r in range(8): S(f'v_exp_f32 v{a+r}, v{a+r}')
    for r in range(8): S(f'v_add_f32 v{a+r}, 1.0, v{a+r}')
    for r in range(8): S(f'v_rcp_f32 v{a+r}, v{a+r}')
    for r in range(8): S(f'v_mul_f32 v{a+r}, v{a+r}, v{a+8+r}')
    for j in range(4): S(f'v_cvt_pk_bf16_f32 v{o+j}, v{a+2*j}, v{a+2*j+1}')
    def st():
        return fast_slow(lambda f: A(f'buffer_store_dwordx4 {V(o,4)}, {vL16}, {WS}, s{14+(t>>1)} offen offset:{(t&1)*1024}{f}'))
    st.cls='m'; st.cost=13+8
    S.items.append(('c',st,'hs'))
    return S
G=Gaps([f'v_mfma_f32_32x32x16_bf16 {V(16+16*t,16)}, {V(112+4*(k%NB),4)}, {Ag(4*m,4)}, {"0" if m==0 else V(16+16*t,16)}' for k,(m,t) in enumerate(seq)],33)
def fence(k,toks,lastread):
    def f():
        w=[T[x] for x in toks]
        if lastread is not None: w.append(T[f'dr{lastread}'])
        A.wait_tok(*w); A.barrier()
    G.front(k,call(f,'s',8))
if 'q1' in PLACE['DA']: fence(48-PF-1,['wd1'],None)
fence(48-PF+3,[],47)
fence(96-PF-1,['wd3','wd2'],None)
fence(96-PF+3,[],95)
fence(128-PF+3,[],127); fence(160-PF+3,[],159)
for k in range(len(seq)):
    if k+PF<len(seq): G.fixed(k,d_rd(k+PF))
    if k%knob('wev',3)==0: G.fixed(k,[call(lambda: None,'s',4)])
for t in range(5): G.add(d_epi(t),96+16*(t+1)+3,96+16*(t+2)+(2 if t<4 else 0))
DA0=knob('da0',60)
G.add(b_,0,DA0)
if PLACE['DA']: G.add(place('DA'),knob('da1',0),48-PF-1)
if PLACE['DB']: G.add(place('DB'),48-PF+4,knob('dbend',80))
G.add(cat(we_dma(0,12,RG[1],RG[1]+24576),we_dma(36,40,SCR,SCR+8192)),96-PF+4,128-PF+3)
G.add(we_dma(12,20,RG[2],RG[0]),128-PF+4,160-PF+3)
G.add(we_dma(20,28,RG[2]+16384,RG[0]+16384),160-PF+4,190)
if TS:
    for k in (0,48,96,128,160): G.fixed(k,[call(lambda k=k: ts(f'D slot {k}'))])
for k in range(PF): play(A,d_rd(k),T)
A.lgage=knob('lgaged',12)
runslots(G.slots()); print('D est',G.est,file=sys.stderr)
A.lgage=0
A.barrier()
run(d_epi(5))
run(we_dma(28,36,RG[2]+32768,RG[0]+32768))
ts('D done')
A(f's_mov_b32 {t1}, 0x10000000\ns_cmp_eq_u32 {sKH}, 0\ns_cselect_b32 s100, 0x11111111, {t1}\ns_cselect_b32 s101, 0, 0x01111111')
A(f's_add_u32 {t0}, {sTT}, {sM}\ns_lshl_b64 {sMASK}, s[100:101], {t0}')
base128(12,2)
A(f's_mul_i32 {t0}, {sKH}, 24576\ns_add_u32 {t0}, {t0}, {RG[1]}\nv_add_u32 v152, {t0}, v12\nv_xor_b32 v153, 64, v152')
A(f's_cmp_eq_u32 {sKH}, 0\ns_cselect_b32 {t0}, {RG[2]}, {RG[0]}\nv_add_u32 v154, {t0}, v12\nv_xor_b32 v155, 64, v154')
A(f's_lshl_b32 {t0}, {sKH}, 13\ns_add_u32 {t0}, {t0}, {SCR}\nv_add_u32 v156, {t0}, v12\nv_xor_b32 v157, 64, v156')
for r in range(16): A(f'v_accvgpr_read_b32 v{96+r}, a{240+r}')
publish_flag(2,T['hs'])
A.barrier()
seqE=[(i,s) for i in range(43) for s in range(2)]
NBE=12; PFE=8
def e_rd(k):
    i,s=seqE[k]; b=48+4*(k%NBE)
    if i<12: reg,off=152,i*2048
    elif i<36: reg,off=154,(i-12)*2048
    elif i<40: reg,off=156,(i-36)*2048
    else: reg,off=152,(i-40)*2048
    return [('i',f'ds_read_b64_tr_b16 {V(b+2*rho,2)}, v{reg+s} offset:{off+rho*1024}',f'er{k}') for rho in range(2)]
for k in range(PFE): play(A,e_rd(k),T)
A(f's_add_u32 {t0}, {sTT}, {sM}\ns_mul_i32 {t0}, {t0}, 86\ns_mul_i32 {t1}, {sKH}, 43\ns_add_u32 {t0}, {t0}, {t1}\ns_lshl_b32 {t0}, {t0}, 10\ns_add_u32 {t0}, {t0}, {sCL}\ns_add_u32 {sAL}, {t0}, {HH}')
A.wait_lg0(); A.barrier()
run(we_dma(40,43,RG[1],RG[1]+24576))
ts('E poll start')
poll_flags(2)
ts('E poll done')
a_,b_=asplit(43,0,10); run(a_)
A.barrier()
G=Gaps([f'v_mfma_f32_32x32x16_bf16 {V(16+16*s,16)}, {V(48+4*(k%NBE),4)}, {Ag(4*i,4)}, {"0" if i==0 else V(16+16*s,16)}' for k,(i,s) in enumerate(seqE)],33)
for k in range(len(seqE)):
    if k+PFE<len(seqE): G.fixed(k,e_rd(k+PFE))
    if k%2==1: G.fixed(k,[call(lambda: None,'s',4)])
G.add(b_,0,66)
S=Stream()
S(f'v_and_b32 v8, 15, {vL}\nv_bfe_u32 v9, {vL}, 4, 1\nv_lshl_add_u32 v8, v8, 1, v9\nv_lshlrev_b32 v8, 10, v8\nv_lshrrev_b32 v9, 5, {vL}\nv_lshl_add_u32 v10, v9, 4, v8')
S(f's_lshl_b32 {t0}, {sW}, 12\ns_add_u32 {t0}, {t0}, {SCR}\nv_add_u32 v8, {t0}, {vL16}\nv_xor_b32 v9, 8192, v8')
G.add(S,68,80)
def fe():
    A.wait_tok(T['er79']); A.barrier()
G.front(80,call(fe))
A.lgage=knob('lgagee',14)
runslots(G.slots()); print('E est',G.est,file=sys.stderr)
A.lgage=0
kreduce(32,48)
for r in range(0,16,2): A(f'v_pk_add_f32 {V(16+r,2)}, {V(16+r,2)}, {V(48+r,2)}')
ts('E gemm done')
for r in range(0,16,2): A(f'v_pk_fma_f32 {V(16+r,2)}, {V(16+r,2)}, {V(96+r,2)}, {V(240+r,2)}')
for j in range(8): A(f'v_cvt_pk_bf16_f32 v{32+j}, v{16+2*j}, v{17+2*j}')
for pr in range(2):
    A(f'v_permlane32_swap_b32 v{32+4*pr}, v{34+4*pr}\nv_permlane32_swap_b32 v{33+4*pr}, v{35+4*pr}')
OF=knob('outf','')
A(f'buffer_store_dwordx4 v[32:35], v10, {OUT}, {sOFF} offen {OF}')
A(f'buffer_store_dwordx4 v[36:39], v10, {OUT}, {sOFF} offen offset:32 {OF}')
if TS:
    A.wait_vm0()
    ts('end')
    A('s_memrealtime s[100:101]'); A.wait_lg0()
    A(f'v_writelane_b32 {vTS}, s100, 63')
    A(f'v_writelane_b32 {vTS}, {sFAST}, 62')
    A(f's_lshl_b32 {t0}, s2, 2\ns_add_u32 {t0}, {t0}, {sW}\ns_lshl_b32 {t0}, {t0}, 8\ns_add_u32 {t0}, {t0}, {TSOFF}')
    A(f'buffer_store_dword {vTS}, {vL4}, {WS}, {t0} offen')
A.raw('L_end:')
A.raw('    s_endpgm')
A.raw('L_codeend:')
A.out+=TAIL

hdr=open('cdna_kernels/'+NAME+'.s.ref').read().split('\n')
head=[l for l in hdr if l.startswith(';') and '@launch' not in l and 'Override launch' not in l and 'grid=ceil' not in l]
o='\n'.join(head)+'\n; @launch grid=(256,1,1) block=(256,1,1) lds=163840\n'
o+='.amdgcn_target "amdgcn-amd-amdhsa--gfx950"\n.text\n.globl '+NAME+'_kernel\n.p2align 8\n.type '+NAME+'_kernel,@function\n'
o+=A.text()
o+=f'''.section .rodata,"a"
.p2align 6
.amdhsa_kernel {NAME}_kernel
  .amdhsa_next_free_vgpr 512
  .amdhsa_next_free_sgpr 102
  .amdhsa_accum_offset 256
  .amdhsa_group_segment_fixed_size 0
  .amdhsa_kernarg_size 96
  .amdhsa_user_sgpr_count 2
  .amdhsa_user_sgpr_kernarg_segment_ptr 1
  .amdhsa_system_sgpr_workgroup_id_x 1
.end_amdhsa_kernel
'''
out=[a for a in sys.argv[1:] if not a.startswith('--')]
fn=out[0] if out else 'k.s'
open(fn,'w').write(o.replace('CODE_BYTES','0x12345'))
r=subprocess.run(['clang','-x','assembler','-target','amdgcn-amd-amdhsa','-mcpu=gfx950','-c',fn,'-o','_g.o'],capture_output=True,text=True)
if r.returncode: print(r.stderr[:3000]); sys.exit(1)
sy=subprocess.run(['llvm-readelf','-s','_g.o'],capture_output=True,text=True).stdout
ad=lambda n:int(re.search(r'([0-9a-f]{16})\s+\d+\s+\w+\s+\w+\s+\w+\s+\w+\s+'+n+r'\n',sy).group(1),16)
cb=ad('L_codeend')-ad('L_pcref')-4
open(fn,'w').write(o.replace('CODE_BYTES',hex(cb)))
print('code bytes',ad('L_codeend'),'nops',A.nnop,'nts',nts[0],file=sys.stderr)
```

```python
import sys,struct,subprocess,re
from asmlib import Asm,Stream,play,merge,Gaps
NAME="adaLN_cond__sliding_local_dilated__glu_gated_glu__prompt"
TS = '--ts' in sys.argv
HOT= '--hot' in sys.argv
def knob(n,d):
    for a in sys.argv:
        if a.startswith('--'+n+'='): return type(d)(a.split('=')[1])
    return d
PLACE=dict(B5='misc,two,pre,wc0',B6='wc1',B7='wc2,tq0,tq1',ATT='',OST='',CA='q0',CS='',ZST='q1',DA='tq2,tq3,q2',DB='q3,th,te0,te1')
for k in PLACE: PLACE[k]=[x for x in knob(k,PLACE[k]).split(',') if x]
SL=[81920,106496,131072]; MODT=155648; CS=159744
RG=[0,49152,98304]; SCR=147456
MODP=0x10000; TSOFF=0x40000; CL0=0x200000; CLS=0x100000
XCC=0; FLAGS=0x100; STATS=0x1000; OO=0x10000; ZZ=0x10000; HH=0x50000; DUMMY=0xB0000
X,WQ,WO,WG,WU,WD,CC,WM,OUT,WS = [f's[{i}:{i+3}]' for i in range(28,68,4)]
sW,sX,sA,sRB,sL3,sA16,sCL,sTAG,sFAST = [f's{i}' for i in range(68,77)]
sM,sKH,sS0='s77','s78','s79'
sTB=[f's{i}' for i in range(80,84)]
sROT=[f's{i}' for i in range(84,88)]
t0,t1,t2,t3='s88','s89','s90','s91'
sMASK='s[92:93]'; sP='s[94:95]'; sCNT='s96'; sOFF='s97'; sAL='s98'; sTT='s99'
sG,sLD,sG2,sWJ,sFL,sOA,sHS,sWL3,sWA16,sTO='s4','s5','s6','s7','s8','s9','s10','s11','s12','s13'
vL='v1'; vL16='v2'; vL4='v3'; vTS='v15'
LOG2E=1.4426950408889634
def f2u(x): return '0x%08x'%struct.unpack('<I',struct.pack('<f',x))[0]
def V(a,n=1): return f'v{a}' if n==1 else f'v[{a}:{a+n-1}]'
def Ag(a,n=1): return f'a{a}' if n==1 else f'a[{a}:{a+n-1}]'

A=Asm(); T={}; TAIL=[]
nts=[0]
def ts(name):
    if not TS: return
    A.wait_lg0()
    A('s_memtime s[100:101]'); A.wait_lg0()
    A(f'v_writelane_b32 {vTS}, s100, {nts[0]}')
    print(f'ts{nts[0]}: {name}', file=sys.stderr)
    nts[0]+=1
def run(s): play(A,s.items,T)
def runslots(slots):
    for sl in slots: play(A,sl,T)
def cat(*ss):
    r=Stream()
    for s in ss: r.items+=s.items
    return r
def srd(name,ptr,size):
    b=int(name[2:name.index(':')])
    A(f's_mov_b32 s{b}, s{ptr}\ns_and_b32 s{b+1}, s{ptr+1}, 0xffff\ns_mov_b32 s{b+2}, {size}\ns_mov_b32 s{b+3}, 0x20000')
def fast_slow(fn):
    ls=A.newlabel('L_slow'); lj=A.newlabel('L_join')
    A(f's_cmp_eq_u32 {sFAST}, 0')
    A.raw(f'    s_cbranch_scc1 {ls}')
    n0=len(A.out)
    r=fn('@SC@')
    body=A.out[n0:]; del A.out[n0:]
    A.out+= [l.replace('@SC@','') for l in body]
    A.raw(f'{lj}:')
    TAIL.append(f'{ls}:'); TAIL.extend(l.replace('@SC@',' sc1') for l in body); TAIL.append(f'    s_branch {lj}')
    return r
def publish_flag(phase,tok):
    A(f'v_mov_b32 v7, {sTAG}')
    A.wait_tok(tok)
    A('s_mov_b64 exec, 1')
    fast_slow(lambda f: A(f'buffer_store_dword v7, off, {WS}, {sFL} offset:{FLAGS+phase*256}{f}'))
    A('s_mov_b64 exec, -1')
def poll_flags(phase):
    l=A.newlabel('L_poll'); d=A.newlabel('L_pd')
    A(f's_mov_b32 {sCNT}, 0')
    A.label(l)
    A(f'buffer_load_dword v7, {vL4}, {WS}, {sCL} offen offset:{FLAGS+phase*256} sc1')
    A(f's_add_u32 {sCNT}, {sCNT}, 1')
    A.wait_vm0()
    A(f'v_cmp_eq_u32 vcc, {sTAG}, v7')
    A(f's_and_b64 {sP}, vcc, {sMASK}')
    A(f's_cmp_eq_u64 {sP}, {sMASK}')
    A(f's_cbranch_scc1 {d}')
    A(f's_cmp_lt_u32 {sCNT}, 0x80000')
    A(f's_cbranch_scc1 {l}')
    A.label(d)
def dma(S,voff,srd_,goff,loff,name,imm=0):
    o=f' offset:{imm}' if imm else ''
    S(f's_add_u32 m0, {sLD}, {loff-imm}')
    so=sG
    if goff is not None: S(f's_add_u32 {sG2}, {sG}, {goff}'); so=sG2
    S(f'buffer_load_dwordx4 {voff}, {srd_}, {so} offen{o} lds',name)
def tlanes(S,n): S(f'v_min_u32 v5, {n-1}, {vL}\nv_lshlrev_b32 v5, 7, v5')
def touch(S,srd_,soff,voff='v5'): S(f'buffer_load_dword v14, {voff}, {srd_}, {soff} offen')
def aloads(n,reg):
    S=Stream()
    for i in range(n):
        S(f'buffer_load_dwordx4 {Ag(reg+4*i,4)}, {vL16}, {WS}, {sAL} offen offset:{(i%4)*1024} sc1')
        if i%4==3 and i<n-1: S(f's_add_u32 {sAL}, {sAL}, 4096')
    return S
def asplit(n,reg,k):
    S=aloads(n,reg); return split(S,k+k//4)
def call(fn,cls='s',cost=8):
    fn.cls=cls; fn.cost=cost; return ('c',fn,None)
def split(S,n):
    a=Stream(); b=Stream(); a.items=S.items[:n]; b.items=S.items[n:]; return a,b

A.raw(f'{NAME}_kernel:')
A('s_cmp_ge_u32 s2, 256')
A('s_cbranch_scc1 L_end')
A('s_load_dwordx16 s[4:19], s[0:1], 0')
A('s_load_dwordx8 s[20:27], s[0:1], 64')
if TS: A('s_memtime s[100:101]\ns_memrealtime s[98:99]')
A(f'v_lshrrev_b32 v8, 6, v0\nv_and_b32 {vL}, 63, v0')
A(f'v_readfirstlane_b32 {sW}, v8')
A(f'v_lshlrev_b32 {vL16}, 4, {vL}\nv_lshlrev_b32 {vL4}, 2, {vL}')
A(f's_and_b32 {sX}, s2, 7\ns_lshr_b32 {sA}, s2, 3\ns_lshr_b32 {sRB}, {sA}, 3\ns_and_b32 {sL3}, {sA}, 7\ns_and_b32 {sA16}, {sA}, 15')
A(f's_lshl_b32 {t0}, {sX}, 1\ns_lshr_b32 {t1}, {sA}, 4\ns_add_u32 {t0}, {t0}, {t1}')
A(f's_lshl_b32 {sCL}, {t0}, 20\ns_add_u32 {sCL}, {sCL}, {CL0}')
A(f's_lshl_b32 {sS0}, {sX}, 8\ns_lshl_b32 {t1}, {sRB}, 6\ns_add_u32 {sS0}, {sS0}, {t1}')
A(f's_and_b32 {sM}, {sW}, 1\ns_lshr_b32 {sKH}, {sW}, 1')
for i in range(4):
    A(f's_add_u32 {t0}, {sRB}, {i}\ns_and_b32 {sROT[i]}, {t0}, 3')
A(f'v_lshrrev_b32 v8, 3, {vL}\nv_and_b32 v9, 7, {vL}\nv_and_b32 v10, 2, v8\nv_xor_b32 v9, v9, v10\nv_lshlrev_b32 v9, 4, v9\nv_xor_b32 v10, 64, v9')
A(f'v_mul_u32_u24 v11, 6144, v8\nv_add_u32 v4, v11, v9\nv_add_u32 v5, v11, v10')
A(f'v_mul_u32_u24 v11, 3072, v8\nv_add_u32 v6, v11, v9\nv_add_u32 v7, v11, v10\nv_add_u32 v7, {8*3072}, v7')
A(f'v_lshlrev_b32 v12, 7, {vL}')
A(f'v_lshrrev_b32 v8, 4, {vL}\nv_and_b32 v9, 15, {vL}')
A(f'v_lshrrev_b32 v10, 2, v9\nv_lshl_add_u32 v10, v8, 3, v10\nv_lshlrev_b32 v10, 7, v10')
A(f'v_lshrrev_b32 v11, 3, v9\nv_and_b32 v13, 1, v8\nv_lshl_or_b32 v11, v13, 1, v11\nv_xor_b32 v11, {sW}, v11')
A(f'v_lshl_add_u32 v10, v11, 5, v10\nv_and_b32 v13, 3, v9\nv_lshl_add_u32 v13, v13, 3, v10')
A(f's_lshl_b32 {t0}, {sW}, 2\nv_add_u32 v8, {t0}, v8\nv_lshlrev_b32 v8, 10, v8\nv_lshl_add_u32 v11, v9, 4, v8')
A.wait_lg0()
if TS:
    A(f'v_writelane_b32 {vTS}, s98, 61')
    A(f'v_writelane_b32 {vTS}, s100, 0'); nts[0]=1; print('ts0: entry',file=sys.stderr)
A(f's_load_dword {sTAG}, s[26:27], 0')
A(f's_and_b32 {t0}, {sRB}, 1\ns_lshl_b32 {sTT}, {t0}, 1')
srd(WM,20,512*3072*2); srd(CC,18,1024); srd(X,4,2048*512*2)
def prod_cond(lo,hi,lab):
    A(f's_sub_u32 {t0}, {sA}, {lo}\ns_cmp_ge_u32 {t0}, {hi-lo}')
    A(f's_cbranch_scc1 {lab}')
def prod_loads(lo,hi):
    lab=A.newlabel('L_npl'); prod_cond(lo,hi,lab); A.begin_region()
    A(f's_and_b32 {t0}, {sA}, 3\ns_lshl_b32 {t1}, {t0}, 8')
    tc=A(f'buffer_load_dword a255, {vL4}, {CC}, {t1} offen')
    A(f's_lshl_b32 {t1}, {t0}, 7\ns_lshl_b32 {t2}, {sW}, 5\ns_add_u32 {t1}, {t1}, {t2}\ns_mul_i32 {t1}, {t1}, 6144')
    A(f's_lshr_b32 {t2}, {sA}, 2\ns_lshl_b32 {t2}, {t2}, 3\ns_add_u32 {t2}, {t2}, {sX}\ns_lshl_b32 {t2}, {t2}, 7')
    A(f's_add_u32 {t1}, {t1}, {t2}\ns_lshl_b32 {t3}, {sW}, 12')
    for i in range(4):
        A(f's_add_u32 m0, {t3}, {i*1024}\ns_add_u32 {t2}, {t1}, {i*8*6144}')
        tw=A(f'buffer_load_dwordx4 {"v4" if i%2==0 else "v5"}, {WM}, {t2} offen lds')
    A.end_region(); A.label(lab)
    return tc,tw
def prod_compute(lo,hi,toks,R):
    tc,tw=toks
    lab=A.newlabel('L_npc'); prod_cond(lo,hi,lab); A.begin_region()
    a,b,c,d=R,R+1,R+2,R+3
    A(f'v_accvgpr_read_b32 v{b}, a255')
    A(f'v_lshlrev_b32 v{a}, 16, v{b}\nv_and_b32 v{b}, 0xffff0000, v{b}')
    A(f'v_mul_f32 v{c}, {f2u(-LOG2E)}, v{a}\nv_mul_f32 v{d}, {f2u(-LOG2E)}, v{b}')
    for r in (c,d): A(f'v_exp_f32 v{r}, v{r}')
    for r in (c,d): A(f'v_add_f32 v{r}, 1.0, v{r}')
    for r in (c,d): A(f'v_rcp_f32 v{r}, v{r}')
    A(f'v_mul_f32 v{a}, v{a}, v{c}\nv_mul_f32 v{b}, v{b}, v{d}')
    A(f'v_cvt_pk_bf16_f32 v{a}, v{a}, v{b}')
    A(f's_lshl_b32 {t0}, {sW}, 8\ns_add_u32 {t0}, {t0}, {CS}')
    A(f'v_add_u32 v{b}, {t0}, {vL4}')
    tk=A(f'ds_write_b32 v{b}, v{a}')
    A(f'v_and_b32 v{c}, 48, {vL}\nv_add_u32 v{a}, {t0}, v{c}')
    A.wait_tok(tk)
    for k in range(4): A(f'ds_read_b128 {V(R+8+4*k,4)}, v{a} offset:{k*64}')
    A(f's_and_b32 {t0}, {sA}, 3\ns_mul_i32 {t0}, {t0}, 12288')
    A(f's_lshr_b32 {t2}, {sA}, 2\ns_lshl_b32 {t2}, {t2}, 3\ns_add_u32 {t2}, {t2}, {sX}\ns_lshl_b32 {t2}, {t2}, 8')
    A(f's_add_u32 {t0}, {t0}, {t2}\ns_lshl_b32 {t2}, {sW}, 6\ns_add_u32 {t0}, {t0}, {t2}\ns_add_u32 {t0}, {t0}, {MODP}')
    A(f'v_mov_b32 v{b}, 0xffffff00')
    A.wait_tok(tw)
    A.barrier()
    for k in range(4):
        for rho in range(2):
            A(f'ds_read_b64_tr_b16 {V(R+24+4*k+2*rho,2)}, v13 offset:{k*4096+rho*512}')
    for k in range(4):
        A(f'v_mfma_f32_16x16x32_bf16 {V(R+4,4)}, {V(R+24+4*k,4)}, {V(R+8+4*k,4)}, {"0" if k==0 else V(R+4,4)}')
    for r in range(4): A(f'v_and_or_b32 v{R+4+r}, v{R+4+r}, v{b}, {sTB[r]}')
    A('s_mov_b32 exec_lo, 0x00010001\ns_mov_b32 exec_hi, 0x00010001')
    A(f'buffer_store_dwordx4 {V(R+4,4)}, v{c}, {WS}, {t0} offen sc1')
    A('s_mov_b64 exec, -1')
    A.end_region(); A.label(lab)
ptk=prod_loads(0,8)
A(f's_mul_i32 {t0}, {sL3}, 80\ns_mul_i32 {t1}, {sW}, 20\ns_add_u32 {t0}, {t0}, {t1}\ns_lshl_b32 {t0}, {t0}, 7')
A(f's_add_i32 {t1}, {sS0}, -16\ns_lshl_b32 {t1}, {t1}, 10\ns_add_i32 {t0}, {t0}, {t1}\ns_max_i32 {t0}, {t0}, 0')
A('s_mov_b64 exec, 0xfffff')
A(f'buffer_load_dword v14, v12, {X}, {t0} offen')
A(f's_getpc_b64 {sP}')
A.raw('L_pcref:')
A(f's_lshl_b32 {t0}, {sA}, 2\ns_add_u32 {t0}, {t0}, {sW}\ns_lshl_b32 {t0}, {t0}, 9')
A(f'v_add_u32 v8, {t0}, v12\nv_min_u32 v8, CODE_BYTES, v8')
A('s_mov_b64 exec, 0xf')
if knob('ctouch',1): A(f'global_load_dword v14, v8, {sP}')
srd(WQ,6,512*1536*2); srd(WS,26,0x2000000)
srd(WO,8,512*512*2); srd(WG,12,512*1376*2); srd(WU,14,512*1376*2); srd(WD,16,1376*512*2); srd(OUT,22,2048*512*2)
if knob('tlb',1):
    A('s_mov_b64 exec, 1')
    A(f's_cmp_lg_u32 {sW}, 3'); A('s_cbranch_scc1 L_notlb'); A.begin_region()
    for b in (WQ,WO,WG,WU,WD): A(f'buffer_load_dword v14, off, {b}, 0')
    A(f'buffer_load_dword v14, off, {WS}, {sCL} offset:{FLAGS} sc1')
    A.end_region(); A.label('L_notlb')
A('s_mov_b64 exec, -1')
def xload(g):
    A(f's_add_i32 {t0}, {sS0}, {16*g-16}')
    if g==0: A(f's_max_i32 {t0}, {t0}, 0')
    A(f's_lshl_b32 {t0}, {t0}, 10')
    for a in range(4):
        A(f's_lshl_b32 {t1}, {sROT[a]}, 8\ns_add_u32 {t1}, {t1}, {t0}')
        A(f'buffer_load_dwordx4 {V(176+(g*4+a)*4,4)}, v11, {X}, {t1} offen')
NX0=knob('nx0',1)
for g in range(NX0): xload(g)
A.wait_lg0()
A(f's_mul_i32 {sTAG}, {sTAG}, 0x9E3779B1\ns_add_u32 {sTAG}, {sTAG}, 0x7F4A7C15')
for i in range(4):
    A(f's_lshr_b32 {sTB[i]}, {sTAG}, {8*i}\ns_and_b32 {sTB[i]}, {sTB[i]}, 0xff')
A(f's_lshl_b32 {sWJ}, {sA}, 2\ns_add_u32 {sWJ}, {sWJ}, {sW}')
if HOT: A(f's_lshl_b32 {sWL3}, {sL3}, 7\ns_mov_b32 {sWA16}, 0\ns_mov_b32 {sWJ}, 0')
else: A(f's_lshl_b32 {sWL3}, {sL3}, 7\ns_mul_i32 {sWA16}, {sA16}, 192')
A(f's_lshl_b32 {sFL}, {sA16}, 2\ns_add_u32 {sFL}, {sFL}, {sW}\ns_lshl_b32 {sFL}, {sFL}, 2\ns_add_u32 {sFL}, {sFL}, {sCL}')
ts('first loads issued')
A(f's_getreg_b32 {sFAST}, hwreg(HW_REG_XCC_ID, 0, 4)')
A(f's_cmp_lg_u32 {sW}, 0')
A('s_cbranch_scc1 L_noxcc')
A.begin_region()
A(f'v_mov_b32 v8, {sFAST}\nv_mov_b32 v9, {sTAG}')
A(f's_lshl_b32 {t0}, {sA16}, 3\ns_add_u32 {t0}, {t0}, {sCL}')
A('s_mov_b64 exec, 1')
A(f'buffer_store_dwordx2 v[8:9], off, {WS}, {t0} offset:{XCC} sc1')
A('s_mov_b64 exec, -1')
A.end_region()
A.label('L_noxcc')
prod_compute(0,8,ptk,20)
ts('mod published')
for g in range(NX0,5): xload(g)
def wb_dma(st):
    S=Stream()
    if st==0:
        S(f's_mul_i32 {sG}, {sW}, {16*3072}\ns_add_u32 {sG}, {sG}, {sWL3}\ns_lshl_b32 {sLD}, {sW}, 11')
        for q in range(4): S(f's_mul_i32 s{17+q}, {sROT[q]}, {128*3072}\ns_add_u32 s{17+q}, s{17+q}, {sG}')
    S(f's_add_u32 {sG}, s{17+(st>>1)}, {(st&1)*64*3072}')
    for sec in range(3):
        for i in range(2):
            dma(S,"v6" if i==0 else "v7",WQ,None,SL[st%3]+sec*8192+i*1024,f'wb{st}',imm=sec*1024)
    return S
def wb_read(st):
    S=Stream()
    reg,off=('v12',SL[st%3]-SL[0]) if st%3<2 else ('v13',0)
    for cc in range(2):
        for sec in (1,2,0):
            for rho in range(2):
                S(f'ds_read_b64_tr_b16 {Ag((st*2+cc)*12+sec*4+2*rho,2)}, {reg} offset:{off+sec*8192+cc*4096+rho*512}',f'wr{st}')
    return S
run(wb_dma(0))
if knob('w1early',0): run(wb_dma(1))
ptk=prod_loads(8,24)
ts('x + W0 issued')
NR=lambda a,g: 16+a*40+g*8
def ln1(g):
    raw=176+g*16
    A('s_mov_b32 s100, 0x3f803f80')
    A(f'v_dot2_f32_bf16 v8, v{raw}, s100, 0')
    A(f'v_dot2_f32_bf16 v9, v{raw}, v{raw}, 0')
    for j in range(1,16):
        A(f'v_dot2_f32_bf16 v8, v{raw+j}, s100, v8')
        A(f'v_dot2_f32_bf16 v9, v{raw+j}, v{raw+j}, v9')
    nn=lambda j: NR(j>>2,g)+2*(j&3)
    up=lambda j: A(f'v_lshlrev_b32 v{nn(j)}, 16, v{raw+j}\nv_and_b32 v{nn(j)+1}, 0xffff0000, v{raw+j}')
    up(0); k=1
    for sh in (8,4,2,1):
        A(f'v_add_f32_dpp v8, v8, v8 row_ror:{sh} row_mask:0xf bank_mask:0xf')
        A(f'v_add_f32_dpp v9, v9, v9 row_ror:{sh} row_mask:0xf bank_mask:0xf')
        up(k); k+=1
    A(f'v_mul_f32 v8, {f2u(1/512)}, v8\nv_mul_f32 v9, {f2u(1/512)}, v9')
    A(f'v_fma_f32 v9, -v8, v8, v9')
    A(f'v_max_f32 v9, 0, v9\nv_add_f32 v9, {f2u(1e-5)}, v9\nv_rsq_f32 v10, v9')
    for j in range(k,16): up(j)
    A(f'v_mul_f32_e64 v12, -v8, v10')
    for j in range(16):
        A(f'v_pk_fma_f32 {V(nn(j),2)}, {V(nn(j),2)}, v[10:11], v[12:13] op_sel_hi:[1,0,0]')
NL0=knob('nl0',3)
for g in range(NL0): ln1(g)
def modloads(S,voff,reg):
    for kq in range(4):
        S(f's_mov_b32 {sTO}, {MODP+kq*12288}\nbuffer_load_dwordx4 {V(reg+4*kq,4)}, {voff}, {WS}, {sTO} offen sc1')
def modfin(voff,reg,tmp,pk=True,addr=''):
    S=Stream(); l=A.newlabel('L_mchk'); r=A.newlabel('L_mretry')
    S.group(f's_mov_b32 {sCNT}, 0')
    def chk():
        A.raw(f'{l}:')
        A(f's_mov_b32 s100, 0x0c0c0400\ns_mov_b32 s101, 0x04000c0c\ns_mov_b64 {sP}, -1')
        for kq in range(4):
            b=reg+4*kq
            A(f'v_perm_b32 v{tmp}, v{b+1}, v{b}, s100\nv_perm_b32 v{tmp+1}, v{b+3}, v{b+2}, s101\nv_or_b32 v{tmp}, v{tmp}, v{tmp+1}')
            A(f'v_cmp_eq_u32 vcc, {sTAG}, v{tmp}')
            A(f's_and_b64 {sP}, {sP}, vcc')
        A(f's_cmp_eq_u64 {sP}, -1')
        A.raw(f'    s_cbranch_scc0 {r}')
        A.raw(f'{l}_ok:')
        TAIL.append(f'{r}:')
        for ln in addr.split('\n'):
            if ln: TAIL.append('    '+ln)
        for kq in range(4):
            TAIL.append(f'    s_mov_b32 {sTO}, {MODP+kq*12288}\n    buffer_load_dwordx4 {V(reg+4*kq,4)}, {voff}, {WS}, {sTO} offen sc1')
        TAIL.append(f'    s_add_u32 {sCNT}, {sCNT}, 1\n    s_waitcnt vmcnt(0)\n    s_cmp_lt_u32 {sCNT}, 0x80000\n    s_cbranch_scc1 {l}\n    s_branch {l}_ok')
    S.call(chk)
    for r_ in range(16): S(f'v_and_b32 v{reg+r_}, 0xffffff00, v{reg+r_}')
    if pk:
        for r_ in range(0,4,2): S(f'v_pk_add_f32 {V(reg+r_,2)}, {V(reg+r_,2)}, {V(reg+4+r_,2)}\nv_pk_add_f32 {V(reg+8+r_,2)}, {V(reg+8+r_,2)}, {V(reg+12+r_,2)}')
        for r_ in range(0,4,2): S(f'v_pk_add_f32 {V(reg+r_,2)}, {V(reg+r_,2)}, {V(reg+8+r_,2)}')
    else:
        for r_ in range(4): S(f'v_add_f32 v{reg+r_}, v{reg+r_}, v{reg+4+r_}\nv_add_f32 v{reg+8+r_}, v{reg+8+r_}, v{reg+12+r_}')
        for r_ in range(4): S(f'v_add_f32 v{reg+r_}, v{reg+r_}, v{reg+8+r_}')
    rnd(S,reg)
    return S
def rnd(S,reg):
    S(f'v_cvt_pk_bf16_f32 v{reg+4}, v{reg}, v{reg+1}\nv_cvt_pk_bf16_f32 v{reg+5}, v{reg+2}, v{reg+3}')
    S(f'v_lshlrev_b32 v{reg}, 16, v{reg+4}\nv_and_b32 v{reg+1}, 0xffff0000, v{reg+4}\nv_lshlrev_b32 v{reg+2}, 16, v{reg+5}\nv_and_b32 v{reg+3}, 0xffff0000, v{reg+5}')
A('v_lshlrev_b32 v11, 4, v0')
S=Stream(); modloads(S,'v11',176); run(S)
if not knob('w1early',0): run(wb_dma(1))
ts('mod poll issued')
for g in range(NL0,5): ln1(g)
ts('LN1 done')
prod_compute(8,24,ptk,192)
A(f'v_lshrrev_b32 v8, 4, {vL}\nv_and_b32 v9, 15, {vL}')
A(f'v_lshrrev_b32 v10, 1, v8\ns_lshl_b32 {t0}, {sW}, 1\nv_add_u32 v10, {t0}, v10\nv_and_b32 v12, 7, v9\nv_xor_b32 v10, v10, v12')
A(f'v_lshlrev_b32 v10, 4, v10\nv_lshl_add_u32 v10, v9, 8, v10\nv_and_b32 v12, 1, v8')
A(f'v_lshl_add_u32 v248, v12, 7, v10\nv_lshl_add_u32 v249, v12, 14, v10')
A(f'v_lshlrev_b32 v250, 5, v9\nv_add_u32 v250, {MODT}, v250')
A(f'v_xor_b32 v9, v9, v8\nv_lshlrev_b32 v9, 4, v9\nv_lshl_add_u32 v252, v8, 8, v9')
A(f'v_add_u32 v12, {SL[0]}, v13\nv_add_u32 v13, {SL[2]}, v13')
for a in range(4): A(f's_lshl_b32 {t0}, {sROT[a]}, 9\nv_add_u32 v{244+a}, {t0}, v250')
ts('late prod done')
run(modfin('v11',176,8))
ts('mod arrived')
A(f's_cmp_ge_u32 {sW}, 2\ns_cselect_b32 {t0}, 1.0, 0')
for r in range(4): A(f'v_add_f32 v{176+r}, {t0}, v{176+r}')
S=Stream(); rnd(S,176); run(S)
A(f'v_add_u32 v11, {MODT}, v11')
A('ds_write_b128 v11, v[176:179]')
run(wb_dma(2))
A(f'v_mov_b32 v8, v252\nv_xor_b32 v9, 64, v252\nv_add_u32 v10, 65536, v252\nv_add_u32 v11, 65536, v9')
A.wait_tok(T['wb0']); A.wait_lg0(); A.barrier()
def sbread(a):
    S=Stream(); r=176+16*(a&1)
    for hh in range(2):
        S(f'ds_read_b128 {V(r+4*hh,4)}, v{244+a} offset:{16*hh}')
        S(f'ds_read_b128 {V(r+8+4*hh,4)}, v{244+a} offset:{2048+16*hh}')
    return S
def masks():
    S=Stream(); NEG=f2u(-1e30)
    S(f'v_lshrrev_b32 v224, 4, {vL}\nv_lshlrev_b32 v224, 2, v224\nv_and_b32 v225, 15, {vL}\nv_mov_b32 v226, {NEG}')
    S.group(f's_cmp_eq_u32 {sS0}, 0\ns_cselect_b32 {t3}, 64, 0')
    for r in range(4):
        S(f'v_add_u32 v227, {r}, v224\nv_sub_u32 v228, v225, v227')
        S(f'v_cmp_gt_u32 vcc, 8, v228\nv_add_u32 v228, 9, v225\nv_cndmask_b32_e64 v{208+r}, v226, 0, vcc')
        S(f'v_cmp_ge_u32 vcc, v227, v228\nv_add_u32 v228, {t3}, v228\nv_cndmask_b32_e64 v{212+r}, v226, 0, vcc')
        S(f'v_cmp_ge_u32 vcc, v227, v228\nv_add_u32 v228, -8, v228\nv_cndmask_b32_e64 v{220+r}, v226, 0, vcc')
        S(f'v_cmp_ge_u32 vcc, v227, v228\nv_cndmask_b32_e64 v{216+r}, v226, 0, vcc')
        S(f'v_cmp_gt_u32 vcc, 8, v227\nv_cndmask_b32_e64 v{216+r}, v226, v{216+r}, vcc')
    return S
def vecaddr(d,u):
    return (f'v_bfe_u32 v{u}, {vL}, 3, 2\nv_and_b32 v{d}, 7, {vL}\nv_lshlrev_b32 v{d}, 4, v{d}\nv_lshl_add_u32 v{d}, v{u}, 11, v{d}\n'
            f's_lshl_b32 {t0}, {sL3}, 8\ns_lshl_b32 {t1}, {sKH}, 7\ns_add_u32 {t0}, {t0}, {t1}\ns_add_u32 {t0}, {t0}, 4096\nv_add_u32 v{d}, {t0}, v{d}')
def voffs():
    S=Stream()
    S(f'v_lshrrev_b32 v229, 3, {vL}\nv_and_b32 v230, 7, {vL}\nv_and_b32 v231, 2, v229\nv_lshlrev_b32 v231, 1, v231\nv_xor_b32 v231, v230, v231')
    S(f'v_lshlrev_b32 v231, 4, v231\nv_lshl_add_u32 v4, v229, 10, v231')
    S(vecaddr(232,229))
    S(f'v_and_b32 v233, 15, {vL}\nv_bfe_u32 v230, {vL}, 4, 1\nv_lshl_add_u32 v229, v233, 1, v230\nv_lshlrev_b32 v233, 3, v233')
    S(f'v_lshlrev_b32 v229, 10, v229\nv_lshrrev_b32 v230, 5, {vL}\nv_lshl_add_u32 v234, v230, 3, v229')
    S(f's_lshl_b32 {t0}, {sM}, 5\ns_add_u32 {t0}, {t0}, {sS0}\ns_lshl_b32 {t0}, {t0}, 10\ns_lshl_b32 {t1}, {sL3}, 7')
    S(f's_add_u32 {t0}, {t0}, {t1}\ns_lshl_b32 {t1}, {sKH}, 6\ns_add_u32 {sOFF}, {t0}, {t1}')
    S(f's_lshl_b32 {sOA}, {sTT}, 5\ns_lshl_b32 {t1}, {sL3}, 2\ns_add_u32 {sOA}, {sOA}, {t1}\ns_add_u32 {sOA}, {sOA}, {sW}')
    S(f's_lshl_b32 {sOA}, {sOA}, 10\ns_add_u32 {sOA}, {sOA}, {OO}')
    S(f's_add_u32 {t0}, {sTT}, {sM}\ns_lshl_b32 {t0}, {t0}, 3\ns_add_u32 {t0}, {t0}, {sL3}\ns_lshl_b32 {t0}, {t0}, 1\ns_add_u32 {t0}, {t0}, {sKH}\ns_lshl_b32 {t0}, {t0}, 9\ns_add_u32 {t0}, {t0}, {STATS}')
    S(f'v_and_b32 v229, 7, {vL}\nv_lshlrev_b32 v229, 7, v229\nv_bfe_u32 v230, {vL}, 3, 1\nv_lshl_add_u32 v235, v230, 15, v229\nv_add_u32 v235, {sOA}, v235')
    S(f'v_and_b32 v230, 0x1ff, v229\nv_add_u32 v230, {t0}, v230\nv_cmp_gt_u32 vcc, 16, {vL}\nv_add_u32 v229, {FLAGS}, v229\nv_cndmask_b32 v235, v230, v235, vcc')
    S(f'v_cmp_gt_u32 vcc, 32, {vL}\ns_add_u32 {sOA}, {sOA}, {sCL}\nv_cndmask_b32 v235, v229, v235, vcc')
    S(f's_mul_i32 {sHS}, {sW}, 86\ns_mul_i32 {t1}, {sA16}, 6\ns_add_u32 {sHS}, {sHS}, {t1}')
    S(f's_lshl_b32 {sHS}, {sHS}, 10\ns_add_u32 {sHS}, {sHS}, {sCL}\ns_add_u32 {sHS}, {sHS}, {HH}')
    S(f'v_lshrrev_b32 v229, 2, {vL}\nv_mul_u32_u24 v229, 2752, v229\nv_and_b32 v230, 3, {vL}\nv_lshlrev_b32 v230, 4, v230\nv_add_u32 v253, v229, v230\nv_xor_b32 v230, 32, v230\nv_add_u32 v254, v229, v230')
    return S
run(sbread(0)); run(wb_read(0)); run(sbread(1))
side=cat(masks(),voffs()).items; ns=len(side); u=0
for a in range(4):
    r=176+16*(a&1)
    for g in range(5):
        n=NR(a,g)
        for j in range(4): A(f'v_pk_fma_f32 {V(n+2*j,2)}, {V(n+2*j,2)}, {V(r+8+2*j,2)}, {V(r+2*j,2)}')
        for j in range(4): A(f'v_cvt_pk_bf16_f32 v{n+j}, v{n+2*j}, v{n+2*j+1}')
        if g==0: A(f'ds_write_b128 v248, {V(n,4)} offset:{a*4096}')
        else: A(f'ds_write_b128 v249, {V(n,4)} offset:{(1+2*((g-1)>>1))*16384+a*4096+((g-1)&1)*128}')
        if g==4 and a<2: run(sbread(a+2))
        u+=1; k0=ns*(u-1)//20; k1=ns*u//20
        play(A,side[k0:k1],T)
A.wait_lg0(); A.barrier()
ts('H written')
accQ=lambda t:56+(t-1)*4
accK=lambda t:72+t*4
accV=lambda t:92+t*4
def breads(sg):
    S=Stream(); buf=16+(sg&1)*20
    for t in range(5):
        if t<4: S(f'ds_read_b128 {V(buf+4*t,4)}, {"v8" if sg%2==0 else "v9"} offset:{t*16384+sg*1024}')
        else:   S(f'ds_read_b128 {V(buf+4*t,4)}, {"v10" if sg%2==0 else "v11"} offset:{sg*1024}')
    return S
WCP=[(0,6),(6,11),(11,16)]
def half_dma(srd_,hrows,i0,i1,lb0,lb1,name):
    S=Stream()
    S(f's_mul_i32 {sG}, {sKH}, {hrows*1024}\ns_lshl_b32 {sLD}, {sM}, 13\ns_add_u32 {sG}, {sG}, {sLD}\ns_add_u32 {sG}, {sG}, {sWL3}')
    S(f's_mul_i32 {sLD}, {sKH}, {(lb1-lb0)&0xffffffff}\ns_lshl_b32 {sG2}, {sM}, 10\ns_add_u32 {sLD}, {sLD}, {sG2}')
    for i in range(i0,i1): dma(S,'v4',srd_,i*16*1024,lb0+(i-i0)*2048,name)
    return S
def misc_loads():
    S=Stream()
    S(f'buffer_load_dwordx2 v[236:237], v233, {WS}, {sCL} offen offset:{XCC} sc1')
    for q in range(4): S(f'buffer_load_dwordx2 {Ag(224+2*q,2)}, v234, {X}, {sOFF} offen offset:{q*16}')
    modloads(S,'v232',112)
    return S
def item(n):
    S=Stream()
    if n=='two': tlanes(S,32); S(f's_lshl_b32 {sTO}, {sWJ}, 12'); touch(S,WO,sTO)
    elif n=='pre': touch(S,WS,sCL,'v235')
    elif n=='misc': return misc_loads()
    elif n[:2]=='wc':
        j=int(n[2]); return half_dma(WO,256,WCP[j][0],WCP[j][1],SL[(8+j)%3],SL[(8+j)%3]+12288,n)
    elif n[:2]=='tq':
        q=int(n[2]); tlanes(S,22); S(f's_add_u32 {sTO}, {sWJ}, {128*q}\ns_mul_i32 {sTO}, {sTO}, 2752')
        touch(S,WG,sTO); touch(S,WU,sTO)
    elif n[:2]=='te':
        h=int(n[2]); tlanes(S,43); S(f's_mul_i32 {sTO}, {sWJ}, {43*128}\ns_add_u32 {sTO}, {sTO}, {h*688*1024}'); touch(S,WD,sTO)
    elif n=='th': tlanes(S,48); touch(S,WS,sHS)
    elif n[0]=='q':
        q=int(n[1])
        S(f's_mul_i32 {sG}, {sW}, {32*2752}\ns_add_u32 {sG}, {sG}, {sWA16}\ns_lshl_b32 {sLD}, {sW}, 11\ns_add_u32 {sG}, {sG}, {q*128*2752}')
        for i in range(2):
            if i: S(f's_add_u32 {sG}, {sG}, {16*2752}')
            for mt in range(2):
                for p in range(3):
                    dma(S,'v6' if mt==0 else 'v13',WG if mt==0 else WU,None,RG[q%3]+p*16384+mt*8192+i*1024,f'wd{q}',imm=p*64)
    else: raise ValueError(n)
    return S
def place(p): return cat(*[item(n) for n in PLACE[p]])
run(breads(0))
mf=[]
for sg in range(16):
    buf=16+(sg&1)*20
    for t in range(5):
        h=V(buf+4*t,4); c=lambda r: '0' if sg==0 else V(r,4)
        mf.append(f'v_mfma_f32_16x16x32_bf16 {V(accK(t),4)}, {Ag(sg*12+4,4)}, {h}, {c(accK(t))}')
        mf.append(f'v_mfma_f32_16x16x32_bf16 {V(accV(t),4)}, {h}, {Ag(sg*12+8,4)}, {c(accV(t))}')
        if t>0: mf.append(f'v_mfma_f32_16x16x32_bf16 {V(accQ(t),4)}, {Ag(sg*12,4)}, {h}, {c(accQ(t))}')
G=Gaps(mf,17)
BP=3
PA=[0,2,3,7,10,14,17,21,26,27]; PT=[4,5,8,9,12,13,15,18,19,22,23,24]
for st in range(8):
    b=st*28
    def bar(st=st):
        w=[T[f'wr{st}']]
        if st<7: w.append(T[f'wb{st+1}'])
        A.wait_tok(*w); A.barrier()
    G.front(b+BP,call(bar,'s',8))
    ar=breads(st*2+1).items+(breads(st*2+2).items if st<7 else [])
    for p,it in zip(PA,ar): G.fixed(b+p,[it])
    if st<7:
        for p,it in zip(PT,wb_read(st+1).items): G.fixed(b+p,[it])
    if TS and '--tsb' in sys.argv: G.fixed(b+27,[call(lambda st=st: ts(f'B stage {st}'))])
for st in range(8):
    b=st*28
    side=wb_dma(st+3) if st+3<8 else place(f'B{st}')
    if len(side): G.add(side,b+BP+1,min(b+28+BP,224),st>=5)
A.lgage=knob('lgage',14)
runslots(G.slots()); print('B est',G.est,file=sys.stderr)
A.lgage=0
A(f'v_mov_b32 v6, v253\nv_mov_b32 v13, v254')
A.barrier()
ts('GEMM B done')
S=Stream()
for t in range(5):
    for j in range(2): S(f'v_cvt_pk_bf16_f32 v{24+2*t+j}, v{accK(t)+2*j}, v{accK(t)+2*j+1}')
for t in range(1,5):
    for j in range(2): S(f'v_cvt_pk_bf16_f32 v{16+2*(t-1)+j}, v{accQ(t)+2*j}, v{accQ(t)+2*j+1}')
prevT={1:0,2:0,3:1,4:2}; pmask={1:216,2:220,3:212,4:212}
SB=lambda t:136+8*(t-1)
MX=lambda t:168+2*(t-1)
OB=lambda t:176+4*(t-1)
for t in range(1,5):
    s=SB(t); q=V(16+2*(t-1),2)
    S(f'v_mfma_f32_16x16x16_bf16 {V(s,4)}, {V(24+2*prevT[t],2)}, {q}, {V(pmask[t],4)}')
    S(f'v_mfma_f32_16x16x16_bf16 {V(s+4,4)}, {V(24+2*t,2)}, {q}, v[208:211]')
vpos={1:36,3:38,2:42,4:44}
for t in range(5):
    for d in ([34,40] if t==0 else [vpos[t]]):
        for j in range(2): S(f'v_cvt_pk_bf16_f32 v{d+j}, v{accV(t)+2*j}, v{accV(t)+2*j+1}')
SC=0.25*LOG2E
S(f's_mov_b32 s100, {f2u(SC)}')
for t in range(1,5):
    s=SB(t); m=MX(t)
    S(f'v_max3_f32 v{m}, v{s}, v{s+1}, v{s+2}\nv_max3_f32 v{m+1}, v{s+3}, v{s+4}, v{s+5}')
    S(f'v_max3_f32 v{m}, v{m}, v{s+6}, v{s+7}\nv_max_f32 v{m}, v{m}, v{m+1}')
for sw in ('v_permlane16_swap_b32','v_permlane32_swap_b32'):
    for t in range(1,5): S(f'v_mov_b32 v{MX(t)+1}, v{MX(t)}')
    for t in range(1,5): S(f'{sw} v{MX(t)}, v{MX(t)+1}')
    for t in range(1,5): S(f'v_max_f32 v{MX(t)}, v{MX(t)}, v{MX(t)+1}')
for t in range(1,5): S(f'v_mul_f32 v{MX(t)}, s100, v{MX(t)}')
for r in range(4): S(f'v_mov_b32 v{46+r}, 0x3f803f80')
vch={1:34,3:36,2:40,4:42}
def pv(u):
    s=SB(u)
    S(f'v_mfma_f32_16x16x32_bf16 {V(OB(u),4)}, {V(vch[u],4)}, {V(s,4)}, 0')
    S(f'v_mfma_f32_16x16x32_bf16 {V(s+4,4)}, v[46:49], {V(s,4)}, 0')
def fin(u):
    o=OB(u); d=16+2*(u-1); sm=SB(u)+4
    S(f'v_rcp_f32 v{sm}, v{sm}')
    S(f'v_pk_mul_f32 {V(o,2)}, {V(o,2)}, {V(sm,2)} op_sel_hi:[1,0]\nv_pk_mul_f32 {V(o+2,2)}, {V(o+2,2)}, {V(sm,2)} op_sel_hi:[1,0]')
    S(f'v_cvt_pk_bf16_f32 v{d}, v{o}, v{o+1}\nv_cvt_pk_bf16_f32 v{d+1}, v{o+2}, v{o+3}')
for t in range(1,5):
    s=SB(t); m=MX(t)
    for r in range(8): S(f'v_fma_f32 v{s+r}, v{s+r}, s100, -v{m}')
    if t>1: pv(t-1)
    for r in range(8): S(f'v_exp_f32 v{s+r}, v{s+r}')
    for j in range(4): S(f'v_cvt_pk_bf16_f32 v{s+j}, v{s+2*j}, v{s+2*j+1}')
    if t>1: fin(t-1)
pv(4)
S.group(f'v_cmp_eq_u32 vcc, {sTAG}, v237\ns_mov_b64 {sP}, vcc')
S.group(f'v_cmp_eq_u32 vcc, {sFAST}, v236\ns_and_b64 {sP}, {sP}, vcc\ns_cmp_eq_u64 {sP}, -1\ns_cselect_b32 {sFAST}, 1, 0')
if '--slow' in sys.argv: S(f's_mov_b32 {sFAST}, 0')
S(f'v_permlane16_swap_b32 v16, v18\nv_permlane16_swap_b32 v17, v19')
fin(4)
S(f'v_permlane16_swap_b32 v20, v22\nv_permlane16_swap_b32 v21, v23')
slots=[[x] for x in S.items]
merge(slots,[place('ATT')],0,len(slots)-20)
runslots(slots)
A(f's_add_u32 {t1}, {sOA}, 32768')
def st_o(f):
    A(f'buffer_store_dwordx4 v[16:19], {vL16}, {WS}, {sOA} offen{f}')
    return A(f'buffer_store_dwordx4 v[20:23], {vL16}, {WS}, {t1} offen{f}')
tk=fast_slow(st_o)
run(place('OST'))
ts('attn done')
def base128(dst,hshift):
    A(f'v_lshrrev_b32 v8, 5, {vL}\nv_and_b32 v9, 15, {vL}\nv_lshrrev_b32 v10, 2, v9\nv_lshl_add_u32 v10, v8, {hshift}, v10\nv_lshlrev_b32 v10, 7, v10')
    A(f'v_lshrrev_b32 v11, 3, v9\nv_xor_b32 v11, {sKH}, v11\nv_lshl_add_u32 v10, v11, 6, v10')
    A(f'v_bfe_u32 v11, {vL}, 4, 1\nv_lshl_add_u32 v10, v11, 5, v10\nv_and_b32 v9, 3, v9\nv_lshl_add_u32 v{dst}, v9, 3, v10')
base128(12,3)
A(f's_mul_i32 {t0}, {sKH}, 12288\ns_add_u32 {t0}, {t0}, {SL[0]}\nv_add_u32 v10, {t0}, v12\nv_xor_b32 v11, 64, v10')
A.wait_tok(T['wc0'],T['wc1'],T['wc2']); A.barrier()
S=Stream()
for j,(c0,c1) in enumerate(WCP):
    for i in range(c0,c1):
        for s in range(2):
            for rho in range(2):
                S(f'ds_read_b64_tr_b16 {V(128+(i*2+s)*4+2*rho,2)}, v{10+s} offset:{SL[(8+j)%3]-SL[0]+(i-c0)*2048+rho*512}')
a_,b_=split(S,knob('wcsplit',40)); run(a_)
publish_flag(0,tk)
run(b_)
ts('B published')
A(f's_and_b32 {t0}, {sRB}, 1\ns_lshl_b32 {t0}, {t0}, 5\ns_lshl_b32 {t1}, {sKH}, 4\ns_add_u32 {t0}, {t0}, {t1}\ns_mov_b64 {sP}, 0xffff\ns_lshl_b64 {sMASK}, {sP}, {t0}')
A(f's_add_u32 {t0}, {sTT}, {sM}\ns_lshl_b32 {t0}, {t0}, 5\ns_lshl_b32 {t1}, {sKH}, 4\ns_add_u32 {t0}, {t0}, {t1}\ns_lshl_b32 {t0}, {t0}, 10\ns_add_u32 {t0}, {t0}, {sCL}\ns_add_u32 {sAL}, {t0}, {OO}')
poll_flags(0)
ts('C poll done')
a_,b_=asplit(16,0,10); run(a_)
A.wait_lg0(); A.barrier()
G=Gaps([f'v_mfma_f32_32x32x16_bf16 {V(16+16*s,16)}, {V(128+(i*2+s)*4,4)}, {Ag(4*i,4)}, {"0" if i==0 else V(16+16*s,16)}' for i in range(16) for s in range(2)],33,4)
G.add(b_,0,12)
if PLACE['CA']: G.add(place('CA'),12,32)
S=modfin('v10',112,8,False,vecaddr(10,11))
S(f'v_bfe_u32 v8, {vL}, 3, 2\nv_cmp_eq_u32 vcc, 2, v8\nv_cndmask_b32_e64 v8, 0, 1.0, vcc')
for r in range(4): S(f'v_add_f32 v{112+r}, v8, v{112+r}')
rnd(S,112)
S(f's_lshl_b32 {t0}, {sW}, 12\ns_add_u32 {t0}, {t0}, {SCR}\nv_add_u32 v8, {t0}, {vL16}')
S(f'v_lshrrev_b32 v9, 5, {vL}\nv_lshlrev_b32 v9, 4, v9\nv_add_u32 v9, {t0}, v9')
S('ds_write_b128 v8, v[112:115]')
for q in range(4):
    S(f'ds_read_b128 {V(64+4*q,4)}, v9 offset:{q*32}')
    S(f'ds_read_b128 {V(96+4*q,4)}, v9 offset:{128+q*32}')
    S(f'ds_read_b128 {V(80+4*q,4)}, v9 offset:{256+q*32}')
    S(f'ds_read_b128 {Ag(240+4*q,4)}, v9 offset:{384+q*32}')
S('v_xor_b32 v9, 8192, v8')
for r in range(8): S(f'v_accvgpr_read_b32 v{120+r}, a{224+r}')
play(A,S.items[:2],T); S.items=S.items[2:]
G.add(S,0,31,False)
runslots(G.slots()); print('C est',G.est,file=sys.stderr)
def kreduce(other,recv):
    for q in range(4): A(f'ds_write_b128 v8, {V(other+4*q,4)} offset:{q*1024}')
    A.wait_lg0(); A.barrier()
    for q in range(4): A(f'ds_read_b128 {V(recv+4*q,4)}, v9 offset:{q*1024}')
for q in range(4):
    for j in range(2):
        A(f'v_lshlrev_b32 v{240+4*q+2*j}, 16, v{120+2*q+j}\nv_and_b32 v{241+4*q+2*j}, 0xffff0000, v{120+2*q+j}')
kreduce(32,48)
A(f's_add_u32 {t0}, {sTT}, {sM}\ns_lshl_b32 {t0}, {t0}, 13\ns_add_u32 {t0}, {t0}, {sCL}\ns_add_u32 {t0}, {t0}, {STATS}')
A(f's_lshl_b32 {t1}, {sL3}, 1\ns_add_u32 {t1}, {t1}, {sKH}\ns_lshl_b32 {t1}, {t1}, 9\ns_add_u32 {t1}, {t1}, {t0}')
A('s_mov_b32 s100, 0x3f803f80')
for r in range(0,16,2): A(f'v_pk_add_f32 {V(16+r,2)}, {V(16+r,2)}, {V(48+r,2)}')
for r in range(0,16,2): A(f'v_pk_fma_f32 {V(16+r,2)}, {V(16+r,2)}, {V(64+r,2)}, {V(240+r,2)}')
for j in range(8): A(f'v_cvt_pk_bf16_f32 v{32+j}, v{16+2*j}, v{17+2*j}')
for j in range(8):
    A(f'v_dot2_f32_bf16 v40, v{32+j}, s100, {"0" if j==0 else "v40"}')
    A(f'v_dot2_f32_bf16 v42, v{32+j}, v{32+j}, {"0" if j==0 else "v42"}')
A(f'v_and_b32 v8, 31, {vL}\nv_lshlrev_b32 v8, 4, v8\nv_lshrrev_b32 v9, 5, {vL}')
A('v_mov_b32 v41, v40\nv_mov_b32 v43, v42')
A('v_lshl_add_u32 v8, v9, 12, v8')
A('v_permlane32_swap_b32 v40, v41\nv_permlane32_swap_b32 v42, v43')
A('v_add_f32 v40, v40, v41\nv_add_f32 v42, v42, v43')
A(f'v_mov_b32 v41, {sTAG}\nv_mov_b32 v43, {sTAG}')
A('s_mov_b64 exec, 0xffffffff')
fast_slow(lambda f: A(f'buffer_store_dwordx4 v[40:43], {vL16}, {WS}, {t1} offen{f}'))
A('s_mov_b64 exec, -1')
ts('stats stored')
run(place('CS'))
for j in range(8): A(f'v_lshlrev_b32 v{240+2*j}, 16, v{32+j}\nv_and_b32 v{241+2*j}, 0xffff0000, v{32+j}')
A(f's_mov_b32 {sCNT}, 0')
A.label('L_st')
for i in range(8): A(f'buffer_load_dwordx4 {V(128+4*i,4)}, v8, {WS}, {t0} offen offset:{i*512} sc1')
A(f's_add_u32 {sCNT}, {sCNT}, 1')
for i in range(8):
    A(f'v_xor_b32 v{129+4*i}, {sTAG}, v{129+4*i}\nv_xor_b32 v{131+4*i}, {sTAG}, v{131+4*i}')
    if i==0: A('v_or_b32 v9, v129, v131')
    else: A(f'v_or3_b32 v9, v9, v{129+4*i}, v{131+4*i}')
A('v_cmp_ne_u32 vcc, 0, v9')
A(f's_cbranch_vccz L_std\ns_cmp_lt_u32 {sCNT}, 0x80000\ns_cbranch_scc1 L_st')
A.label('L_std')
ts('stats arrived')
for i in range(1,8): A(f'v_add_f32 v128, v128, v{128+4*i}\nv_add_f32 v130, v130, v{130+4*i}')
A('v_mov_b32 v129, v128\nv_mov_b32 v131, v130')
A(f's_add_u32 {t0}, {sTT}, {sM}\ns_lshl_b32 {t0}, {t0}, 5')
A('v_permlane32_swap_b32 v128, v129\nv_permlane32_swap_b32 v130, v131')
A('v_add_f32 v128, v128, v129\nv_add_f32 v130, v130, v131')
A(f'v_mul_f32 v128, {f2u(1/512)}, v128\nv_mul_f32 v130, {f2u(1/512)}, v130\nv_fma_f32 v130, -v128, v128, v130\nv_max_f32 v130, 0, v130')
A(f'v_add_f32 v130, {f2u(1e-5)}, v130\nv_rsq_f32 v130, v130')
A(f's_lshl_b32 {t1}, {sL3}, 2\ns_add_u32 {t0}, {t0}, {t1}\ns_lshl_b32 {t1}, {sKH}, 1')
A('v_mul_f32_e64 v128, -v128, v130')
A(f's_add_u32 {t0}, {t0}, {t1}\ns_lshl_b32 {t0}, {t0}, 10\ns_add_u32 {t0}, {t0}, {sCL}\ns_add_u32 {t0}, {t0}, {ZZ}')
for r in range(0,16,2): A(f'v_pk_fma_f32 {V(16+r,2)}, {V(240+r,2)}, v[130:131], v[128:129] op_sel_hi:[1,0,0]')
for r in range(0,16,2): A(f'v_pk_fma_f32 {V(16+r,2)}, {V(16+r,2)}, {V(80+r,2)}, {V(96+r,2)}')
for j in range(8): A(f'v_cvt_pk_bf16_f32 v{32+j}, v{16+2*j}, v{17+2*j}')
def st_z(f):
    A(f'buffer_store_dwordx4 v[32:35], {vL16}, {WS}, {t0} offen{f}')
    return A(f'buffer_store_dwordx4 v[36:39], {vL16}, {WS}, {t0} offen offset:1024{f}')
tk=fast_slow(st_z)
run(place('ZST'))
ts('C epilogue done')
A(f's_mov_b32 s100, 0x55555555\ns_mov_b32 s101, 0\ns_lshl_b32 {t0}, {sKH}, 5\ns_add_u32 {t0}, {t0}, {sM}\ns_lshl_b64 {sMASK}, s[100:101], {t0}')
A(f'v_lshrrev_b32 v8, 5, {vL}\nv_and_b32 v9, 15, {vL}\nv_lshrrev_b32 v10, 2, v9\nv_lshl_add_u32 v10, v8, 2, v10\nv_lshlrev_b32 v10, 6, v10')
A(f'v_bfe_u32 v11, {vL}, 4, 1\nv_mul_u32_u24 v11, 8224, v11\nv_add_u32 v10, v10, v11\nv_and_b32 v9, 3, v9\nv_lshl_add_u32 v152, v9, 3, v10')
A('v_xor_b32 v153, 32, v152')
for r in (1,2): A(f'v_add_u32 v{152+2*r}, {RG[r]}, v152\nv_add_u32 v{153+2*r}, {RG[r]}, v153')
A(f's_lshl_b32 {sAL}, {sW}, 15\ns_add_u32 {sAL}, {sAL}, {sCL}\ns_add_u32 {sAL}, {sAL}, {ZZ}')
for p in range(3):
    A(f's_mul_i32 {t1}, {sA16}, 3\ns_add_u32 {t1}, {t1}, {p}\ns_add_u32 {t0}, {sHS}, {p*2048}\ns_add_u32 {t2}, {sCL}, {DUMMY}\ns_cmp_lt_u32 {t1}, 43\ns_cselect_b32 s{14+p}, {t0}, {t2}')
publish_flag(1,tk)
ts('D poll start')
poll_flags(1)
ts('D poll done')
A(f's_lshl_b32 {t0}, {sW}, 8\ns_add_u32 {t0}, {t0}, s2\ns_cmp_lg_u32 {t0}, 120')
A('s_cbranch_scc1 L_noep')
A.begin_region()
A(f'v_lshrrev_b32 v8, 4, {vL}\nv_lshlrev_b32 v8, 20, v8\nv_and_b32 v9, 15, {vL}\nv_lshl_add_u32 v8, v9, 3, v8')
A(f's_mov_b32 {sCNT}, 0')
A.label('L_ep')
A(f's_mov_b64 {sP}, -1')
for i in range(4):
    A(f's_mov_b32 {t0}, {CL0+i*4*CLS+XCC+4}')
    A(f'buffer_load_dword v{16+i}, v8, {WS}, {t0} offen sc1')
for i in range(4):
    A(f'v_cmp_eq_u32 vcc, {sTAG}, v{16+i}\ns_and_b64 {sP}, {sP}, vcc')
A(f's_add_u32 {sCNT}, {sCNT}, 1')
A(f's_cmp_eq_u64 {sP}, -1\ns_cbranch_scc1 L_epd\ns_cmp_lt_u32 {sCNT}, 0x80000\ns_cbranch_scc1 L_ep')
A.label('L_epd')
A(f'v_mov_b32 v8, {sTAG}\ns_mov_b64 exec, 1')
A(f'buffer_store_dword v8, off, {WS}, 0 sc1')
A('s_mov_b64 exec, -1')
A.end_region()
A.label('L_noep')
a_,b_=asplit(32,0,8); run(a_)
A.barrier()
NB=8; PF=knob('pf',6)
seq=[(m,t) for m in range(16) for t in range(6)]+[(m,t) for t in range(6) for m in range(16,32)]
def d_rd(k):
    m,t=seq[k]; b=112+4*(k%NB); reg=152+2*((m>>3)%3)+(t&1)
    return [('i',f'ds_read_b64_tr_b16 {V(b+2*rho,2)}, v{reg} offset:{(t>>1)*16384+(m&7)*1024+rho*512}',f'dr{k}') for rho in range(2)]
we_dma=lambda i0,i1,l0,l1: half_dma(WD,688,i0,i1,l0,l1,'we')
def d_epi(t):
    S=Stream(); a=16+16*t; o=144+4*(t&1)
    for r in range(8): S(f'v_mul_f32 v{a+r}, {f2u(-LOG2E)}, v{a+r}')
    for r in range(8): S(f'v_exp_f32 v{a+r}, v{a+r}')
    for r in range(8): S(f'v_add_f32 v{a+r}, 1.0, v{a+r}')
    for r in range(8): S(f'v_rcp_f32 v{a+r}, v{a+r}')
    for r in range(8): S(f'v_mul_f32 v{a+r}, v{a+r}, v{a+8+r}')
    for j in range(4): S(f'v_cvt_pk_bf16_f32 v{o+j}, v{a+2*j}, v{a+2*j+1}')
    def st():
        return fast_slow(lambda f: A(f'buffer_store_dwordx4 {V(o,4)}, {vL16}, {WS}, s{14+(t>>1)} offen offset:{(t&1)*1024}{f}'))
    st.cls='m'; st.cost=13+8
    S.items.append(('c',st,'hs'))
    return S
G=Gaps([f'v_mfma_f32_32x32x16_bf16 {V(16+16*t,16)}, {V(112+4*(k%NB),4)}, {Ag(4*m,4)}, {"0" if m==0 else V(16+16*t,16)}' for k,(m,t) in enumerate(seq)],33)
def fence(k,toks,lastread):
    def f():
        w=[T[x] for x in toks]
        if lastread is not None: w.append(T[f'dr{lastread}'])
        A.wait_tok(*w); A.barrier()
    G.front(k,call(f,'s',8))
if 'q1' in PLACE['DA']: fence(48-PF-1,['wd1'],None)
fence(48-PF+3,[],47)
fence(96-PF-1,['wd3','wd2'],None)
fence(96-PF+3,[],95)
fence(128-PF+3,[],127); fence(160-PF+3,[],159)
for k in range(len(seq)):
    if k+PF<len(seq): G.fixed(k,d_rd(k+PF))
    if k%knob('wev',3)==0: G.fixed(k,[call(lambda: None,'s',4)])
for t in range(5): G.add(d_epi(t),96+16*(t+1)+3,96+16*(t+2)+(2 if t<4 else 0))
DA0=knob('da0',60)
G.add(b_,0,DA0)
if PLACE['DA']: G.add(place('DA'),knob('da1',0),48-PF-1)
if PLACE['DB']: G.add(place('DB'),48-PF+4,knob('dbend',80))
G.add(cat(we_dma(0,12,RG[1],RG[1]+24576),we_dma(36,40,SCR,SCR+8192)),96-PF+4,128-PF+3)
G.add(we_dma(12,20,RG[2],RG[0]),128-PF+4,160-PF+3)
G.add(we_dma(20,28,RG[2]+16384,RG[0]+16384),160-PF+4,190)
if TS:
    for k in (0,48,96,128,160): G.fixed(k,[call(lambda k=k: ts(f'D slot {k}'))])
for k in range(PF): play(A,d_rd(k),T)
A.lgage=knob('lgaged',12)
runslots(G.slots()); print('D est',G.est,file=sys.stderr)
A.lgage=0
A.barrier()
run(d_epi(5))
run(we_dma(28,36,RG[2]+32768,RG[0]+32768))
ts('D done')
A(f's_mov_b32 {t1}, 0x10000000\ns_cmp_eq_u32 {sKH}, 0\ns_cselect_b32 s100, 0x11111111, {t1}\ns_cselect_b32 s101, 0, 0x01111111')
A(f's_add_u32 {t0}, {sTT}, {sM}\ns_lshl_b64 {sMASK}, s[100:101], {t0}')
base128(12,2)
A(f's_mul_i32 {t0}, {sKH}, 24576\ns_add_u32 {t0}, {t0}, {RG[1]}\nv_add_u32 v152, {t0}, v12\nv_xor_b32 v153, 64, v152')
A(f's_cmp_eq_u32 {sKH}, 0\ns_cselect_b32 {t0}, {RG[2]}, {RG[0]}\nv_add_u32 v154, {t0}, v12\nv_xor_b32 v155, 64, v154')
A(f's_lshl_b32 {t0}, {sKH}, 13\ns_add_u32 {t0}, {t0}, {SCR}\nv_add_u32 v156, {t0}, v12\nv_xor_b32 v157, 64, v156')
for r in range(16): A(f'v_accvgpr_read_b32 v{96+r}, a{240+r}')
publish_flag(2,T['hs'])
A.barrier()
seqE=[(i,s) for i in range(43) for s in range(2)]
NBE=12; PFE=8
def e_rd(k):
    i,s=seqE[k]; b=48+4*(k%NBE)
    if i<12: reg,off=152,i*2048
    elif i<36: reg,off=154,(i-12)*2048
    elif i<40: reg,off=156,(i-36)*2048
    else: reg,off=152,(i-40)*2048
    return [('i',f'ds_read_b64_tr_b16 {V(b+2*rho,2)}, v{reg+s} offset:{off+rho*1024}',f'er{k}') for rho in range(2)]
for k in range(PFE): play(A,e_rd(k),T)
A(f's_add_u32 {t0}, {sTT}, {sM}\ns_mul_i32 {t0}, {t0}, 86\ns_mul_i32 {t1}, {sKH}, 43\ns_add_u32 {t0}, {t0}, {t1}\ns_lshl_b32 {t0}, {t0}, 10\ns_add_u32 {t0}, {t0}, {sCL}\ns_add_u32 {sAL}, {t0}, {HH}')
A.wait_lg0(); A.barrier()
run(we_dma(40,43,RG[1],RG[1]+24576))
ts('E poll start')
poll_flags(2)
ts('E poll done')
a_,b_=asplit(43,0,10); run(a_)
if knob('wbl2',0):
    A(f's_lshl_b32 {t0}, {sW}, 8\ns_add_u32 {t0}, {t0}, {sA}\ns_cmp_lg_u32 {t0}, {knob("wbl2",0)}')
    A('s_cbranch_scc1 L_nowb'); A.begin_region(); A('buffer_wbl2 sc1'); A.end_region(); A.label('L_nowb')
A.barrier()
G=Gaps([f'v_mfma_f32_32x32x16_bf16 {V(16+16*s,16)}, {V(48+4*(k%NBE),4)}, {Ag(4*i,4)}, {"0" if i==0 else V(16+16*s,16)}' for k,(i,s) in enumerate(seqE)],33)
for k in range(len(seqE)):
    if k+PFE<len(seqE): G.fixed(k,e_rd(k+PFE))
    if k%2==1: G.fixed(k,[call(lambda: None,'s',4)])
G.add(b_,0,66)
S=Stream()
S(f'v_and_b32 v8, 15, {vL}\nv_bfe_u32 v9, {vL}, 4, 1\nv_lshl_add_u32 v8, v8, 1, v9\nv_lshlrev_b32 v8, 10, v8\nv_lshrrev_b32 v9, 5, {vL}\nv_lshl_add_u32 v10, v9, 4, v8')
S(f's_lshl_b32 {t0}, {sW}, 12\ns_add_u32 {t0}, {t0}, {SCR}\nv_add_u32 v8, {t0}, {vL16}\nv_xor_b32 v9, 8192, v8')
G.add(S,68,80)
def fe():
    A.wait_tok(T['er79']); A.barrier()
G.front(80,call(fe))
A.lgage=knob('lgagee',14)
runslots(G.slots()); print('E est',G.est,file=sys.stderr)
A.lgage=0
kreduce(32,48)
for r in range(0,16,2): A(f'v_pk_add_f32 {V(16+r,2)}, {V(16+r,2)}, {V(48+r,2)}')
ts('E gemm done')
for r in range(0,16,2): A(f'v_pk_fma_f32 {V(16+r,2)}, {V(16+r,2)}, {V(96+r,2)}, {V(240+r,2)}')
for j in range(8): A(f'v_cvt_pk_bf16_f32 v{32+j}, v{16+2*j}, v{17+2*j}')
for pr in range(2):
    A(f'v_permlane32_swap_b32 v{32+4*pr}, v{34+4*pr}\nv_permlane32_swap_b32 v{33+4*pr}, v{35+4*pr}')
OF=knob('outf','')
A(f'buffer_store_dwordx4 v[32:35], v10, {OUT}, {sOFF} offen {OF}')
A(f'buffer_store_dwordx4 v[36:39], v10, {OUT}, {sOFF} offen offset:32 {OF}')
if TS:
    A.wait_vm0()
    ts('end')
    A('s_memrealtime s[100:101]'); A.wait_lg0()
    A(f'v_writelane_b32 {vTS}, s100, 63')
    A(f'v_writelane_b32 {vTS}, {sFAST}, 62')
    A(f's_lshl_b32 {t0}, s2, 2\ns_add_u32 {t0}, {t0}, {sW}\ns_lshl_b32 {t0}, {t0}, 8\ns_add_u32 {t0}, {t0}, {TSOFF}')
    A(f'buffer_store_dword {vTS}, {vL4}, {WS}, {t0} offen')
A.raw('L_end:')
A.raw('    s_endpgm')
A.raw('L_codeend:')
A.out+=TAIL

hdr=open('cdna_kernels/'+NAME+'.s.ref').read().split('\n')
head=[l for l in hdr if l.startswith(';') and '@launch' not in l and 'Override launch' not in l and 'grid=ceil' not in l]
o='\n'.join(head)+'\n; @launch grid=(256,1,1) block=(256,1,1) lds=163840\n'
o+='.amdgcn_target "amdgcn-amd-amdhsa--gfx950"\n.text\n.globl '+NAME+'_kernel\n.p2align 8\n.type '+NAME+'_kernel,@function\n'
o+=A.text()
o+=f'''.section .rodata,"a"
.p2align 6
.amdhsa_kernel {NAME}_kernel
  .amdhsa_next_free_vgpr 512
  .amdhsa_next_free_sgpr 102
  .amdhsa_accum_offset 256
  .amdhsa_group_segment_fixed_size 0
  .amdhsa_kernarg_size 96
  .amdhsa_user_sgpr_count 2
  .amdhsa_user_sgpr_kernarg_segment_ptr 1
  .amdhsa_system_sgpr_workgroup_id_x 1
.end_amdhsa_kernel
'''
out=[a for a in sys.argv[1:] if not a.startswith('--')]
fn=out[0] if out else 'k.s'
open(fn,'w').write(o.replace('CODE_BYTES','0x12345'))
r=subprocess.run(['clang','-x','assembler','-target','amdgcn-amd-amdhsa','-mcpu=gfx950','-c',fn,'-o','_g.o'],capture_output=True,text=True)
if r.returncode: print(r.stderr[:3000]); sys.exit(1)
sy=subprocess.run(['llvm-readelf','-s','_g.o'],capture_output=True,text=True).stdout
ad=lambda n:int(re.search(r'([0-9a-f]{16})\s+\d+\s+\w+\s+\w+\s+\w+\s+\w+\s+'+n+r'\n',sy).group(1),16)
cb=ad('L_codeend')-ad('L_pcref')-4
open(fn,'w').write(o.replace('CODE_BYTES',hex(cb)))
print('code bytes',ad('L_codeend'),'nops',A.nnop,'nts',nts[0],file=sys.stderr)
```
